```python
import torch

def _softmax(x, axis=-1):
    return torch.softmax(x, dim=axis)

def _gelu(x):
    return torch.nn.functional.gelu(x, approximate='tanh')

def _silu(x):
    return torch.nn.functional.silu(x)

def _sigmoid(x):
    return torch.sigmoid(x)

def _layernorm(x, axis=-1, eps=1e-05):
    m = x.mean(dim=axis, keepdim=True)
    v = x.var(dim=axis, keepdim=True, unbiased=False)
    return (x - m) / torch.sqrt(v + eps)

def _scatter_add(tgt, idx, src, axis=0):
    return tgt.clone().index_add_(axis, idx, src)

def _segment_sum(src, seg, n):
    out = torch.zeros((n,) + src.shape[1:], dtype=src.dtype)
    return out.index_add_(0, seg, src)

def _pad(x, pw):
    flat = tuple((v for pair in reversed(pw) for v in pair))
    return torch.nn.functional.pad(x, flat)
kernel_name = 'gated_mix__mha_block__mixer_gmlp__prompt'

def setup_inputs():

    _w = lambda a: (lambda t: t.to(torch.bfloat16) if t.is_floating_point() else t)(torch.as_tensor(a))

    def _A_setup():
        B, S, D, H = (1, 2048, 576, 32)
        return {'x': _w((lambda *s: torch.randn(*s, dtype=torch.bfloat16) * 0.05)(B, S, D)), 'wqkv': _w((lambda *s: torch.randn(*s, dtype=torch.bfloat16) * 1.6)(D, 3 * D)), 'wo': _w((lambda *s: torch.randn(*s, dtype=torch.bfloat16) * 0.1)(D, D))}
    _A_in = _A_setup()

    def _B_setup():
        B, S, D, F = (1, 2048, 576, 4608)
        Fh = F // 2
        return {'x': _w((lambda *s: torch.randn(*s, dtype=torch.bfloat16) * 0.05)(B, S, D)), 'w_in': _w((lambda *s: torch.randn(*s, dtype=torch.bfloat16) * 1.6)(D, 2 * Fh)), 'w_sp': _w(0.01 * (lambda *s: torch.randn(*s, dtype=torch.bfloat16) * 1.6)(S, S)), 'b_sp': _w(1.0 + 0.01 * (lambda *s: torch.randn(*s, dtype=torch.bfloat16) * 0.05)(S)), 'w_out': _w((lambda *s: torch.randn(*s, dtype=torch.bfloat16) * 0.05)(Fh, D))}
    _B_in = _B_setup()
    return {'A_x': _A_in['x'], 'A_wqkv': _A_in['wqkv'], 'A_wo': _A_in['wo'], 'B_x': _B_in['x'], 'B_w_in': _B_in['w_in'], 'B_w_sp': _B_in['w_sp'], 'B_b_sp': _B_in['b_sp'], 'B_w_out': _B_in['w_out'], 'gate_w': _w((lambda *s: torch.randn(*s, dtype=torch.bfloat16) * 0.05)(576) * 16.0)}

def reference(A_x, A_wqkv, A_wo, B_x, B_w_in, B_w_sp, B_b_sp, B_w_out, gate_w):

    def _A_ref(x, wqkv, wo):
        B, S, D = x.shape
        H = 32
        Dh = D // H
        qkv = (lambda x, *d: x.permute(*d))((x @ wqkv).reshape(B, S, 3, H, Dh), 2, 0, 3, 1, 4)
        q, k, v = (qkv[0], qkv[1], qkv[2])
        scores = torch.einsum('bhqd,bhkd->bhqk', q, k) * Dh ** (-0.5)
        p = _softmax(scores, axis=-1)
        o = torch.einsum('bhqk,bhkd->bhqd', p, v)
        return (lambda x, *d: x.permute(*d))(o, 0, 2, 1, 3).reshape(B, S, D) @ wo

    def _B_ref(x, w_in, w_sp, b_sp, w_out):
        B, S, D = x.shape
        F = w_in.shape[-1]
        Fh = F // 2
        z = _gelu(torch.einsum('bsd,df->bsf', x, w_in))
        z1 = z[..., :Fh].clone()
        z2 = _layernorm(z[..., Fh:], axis=-1)
        g = torch.einsum('ts,bsf->btf', w_sp, z2) + b_sp[None, :, None]
        return torch.einsum('bsf,fd->bsd', z1 * g, w_out)
    x = A_x
    g = _sigmoid((x * gate_w).sum(-1, keepdims=True))
    a = _A_ref(x, A_wqkv, A_wo)
    b = _B_ref(x, B_w_in, B_w_sp, B_b_sp, B_w_out)
    return g * a + (1 - g) * b
```

```python
import re

_REG = re.compile(r'\b([vas])(\d+)\b|\b([vas])\[(\d+):(\d+)\]|\b(vcc|exec|m0|scc)\b')

def regs_of(tok):
    out = []
    for m in _REG.finditer(tok):
        if m.group(1):
            out.append((m.group(1), int(m.group(2))))
        elif m.group(3):
            out += [(m.group(3), i) for i in range(int(m.group(4)), int(m.group(5)) + 1)]
        else:
            out.append((m.group(6), 0))
    return out

TRANS = ("v_exp_", "v_log_", "v_rcp_", "v_rsq_", "v_sqrt_", "v_sin_", "v_cos_")

def split_ops(s):
    ops, cur, d = [], "", 0
    for ch in s:
        if ch == '[': d += 1
        if ch == ']': d -= 1
        if ch == ',' and d == 0:
            ops.append(cur.strip()); cur = ""
        else:
            cur += ch
    if cur.strip(): ops.append(cur.strip())
    return ops

class Inst:
    __slots__ = ("text", "mn", "kind", "rd", "wr", "passes", "srcc", "srcab", "dpp", "wide", "lds_dma", "nstates", "tag")
    def __init__(self, text):
        self.text = text.strip()
        body = self.text.split(";")[0].strip()
        parts = body.split(None, 1)
        self.mn = mn = parts[0]
        rest = parts[1] if len(parts) > 1 else ""
        ops = split_ops(rest)
        self.rd, self.wr = [], []
        self.passes = 0; self.srcc = []; self.srcab = []; self.dpp = False; self.wide = False; self.lds_dma = False
        self.nstates = 1
        self.tag = None
        R = lambda i: regs_of(ops[i]) if i < len(ops) else []
        allr = lambda a: [r for o in ops[a:] for r in regs_of(o)]
        if mn.startswith("v_mfma"):
            self.kind = "mfma"
            self.passes = 8 if "32x32x16" in mn else 4
            self.wr = R(0); self.srcab = R(1) + R(2); self.srcc = R(3); self.rd = self.srcab + self.srcc
        elif mn.startswith("v_"):
            self.kind = "trans" if mn.startswith(TRANS) else "valu"
            if mn.startswith("v_permlane") and "swap" in mn:
                self.wr = R(0) + R(1); self.rd = R(0) + R(1); self.kind = "permlane"
            elif mn.startswith("v_cmp"):
                self.wr = R(0); self.rd = allr(1)
            elif mn.startswith(("v_readfirstlane", "v_readlane")):
                self.wr = R(0); self.rd = allr(1); self.kind = "readlane"
            elif mn.startswith(("v_add_co", "v_sub_co", "v_addc_co", "v_subb_co")):
                self.wr = R(0) + R(1); self.rd = allr(2)
            else:
                self.wr = R(0); self.rd = allr(1)
                if mn.startswith(("v_fmac", "v_pk_fmac", "v_writelane")) or "_dpp" in mn or "bank_mask" in rest or "dst_unused:UNUSED_PRESERVE" in rest or "op_sel" in rest and mn.startswith("v_cvt"):
                    self.rd = self.rd + self.wr
            if "_dpp" in mn or "row_" in rest or "quad_perm" in rest:
                self.dpp = True
        elif mn.startswith("ds_"):
            self.kind = "lds"
            if mn.startswith(("ds_write", "ds_add", "ds_max", "ds_min", "ds_or")) and "rtn" not in mn:
                self.rd = allr(0)
            else:
                self.wr = R(0); self.rd = allr(1)
        elif mn.startswith(("buffer_", "global_")):
            self.kind = "vmem"
            if re.search(r'\blds\b', rest) or "load_lds" in mn:
                self.lds_dma = True
                self.rd = allr(0) + [("m0", 0)]
            elif "store" in mn:
                self.rd = allr(0)
                self.wide = ("x3" in mn or "x4" in mn)
            elif "atomic" in mn:
                self.rd = allr(0)
                if re.search(r'\bsc0\b', rest):
                    self.wr = R(0)
            else:
                self.wr = R(0); self.rd = allr(1)
        elif mn.startswith(("s_load", "s_buffer_load", "s_memtime", "s_memrealtime")):
            self.kind = "smem"
            self.wr = R(0); self.rd = allr(1)
        elif mn == "s_nop":
            self.kind = "nop"; self.nstates = int(ops[0], 0) + 1
        elif mn in ("s_waitcnt", "s_barrier", "s_setprio", "s_endpgm", "s_sleep") or mn.startswith(("s_branch", "s_cbranch")):
            self.kind = "ctl"
            if mn.startswith("s_cbranch_scc"): self.rd = [("scc", 0)]
            if mn.startswith("s_cbranch_vcc"): self.rd = [("vcc", 0)]
            if mn.startswith("s_cbranch_exec"): self.rd = [("exec", 0)]
        elif mn.startswith("s_"):
            self.kind = "salu"
            if mn.startswith("s_cmp"):
                self.rd = allr(0); self.wr = [("scc", 0)]
            else:
                self.wr = R(0); self.rd = allr(1)
                if "saveexec" in mn: self.wr = self.wr + [("exec", 0)]
        else:
            raise ValueError("unknown instruction " + text)
        self.rd = set(self.rd); self.wr = set(self.wr); self.srcc = set(self.srcc); self.srcab = set(self.srcab)

    def is_valu(self):
        return self.kind in ("valu", "trans", "permlane", "readlane")

def isv(r): return r[0] in ("v", "a")

def need_states(p, c):
    n = 0
    pv = p.is_valu()
    cv = c.is_valu()
    if pv:
        wv = {r for r in p.wr if isv(r)}
        ws = {r for r in p.wr if r[0] in ("s", "vcc")}
        if c.kind == "mfma" and wv & c.rd: n = max(n, 2)
        if c.dpp and wv & c.rd: n = max(n, 2)
        if c.kind == "permlane" and wv & c.rd: n = max(n, 2)
        if c.kind == "readlane" and wv & c.rd: n = max(n, 1)
        if p.kind == "trans" and cv and c.kind != "trans" and wv & c.rd: n = max(n, 1)
        if p.kind == "trans" and c.kind in ("vmem", "lds", "mfma") and wv & c.rd: n = max(n, 2)
        if ("sdwa" in p.mn or "op_sel" in p.text) and cv and wv & (c.rd | c.wr): n = max(n, 1)
        if ws:
            if c.kind == "vmem" and ws & c.rd: n = max(n, 5)
            if cv and ws & c.rd: n = max(n, 4 if c.kind == "readlane" else 2)
            if c.kind in ("salu", "ctl", "smem") and ws & c.rd: n = max(n, 4)
        if ("exec", 0) in p.wr:
            if cv or c.kind == "mfma": n = max(n, 5)
    if p.kind == "mfma":
        big = p.passes == 8
        if c.kind == "mfma":
            if p.wr & c.srcc:
                if not (p.wr == c.srcc and p.passes == c.passes): n = max(n, 10 if big else 6)
            if p.wr & c.srcab: n = max(n, 12 if big else 8)
            if p.wr & c.wr and not (p.wr == c.srcc and p.passes == c.passes):
                n = max(n, 10 if big else 6)
        elif cv:
            if p.wr & (c.rd | c.wr): n = max(n, 12 if big else 8)
            if p.srcc & c.wr: n = max(n, 7 if big else 3)
        elif c.kind in ("vmem", "lds"):
            if p.wr & (c.rd | c.wr): n = max(n, 12 if big else 8)
            if p.srcc & c.wr: n = max(n, 7 if big else 3)
    if p.kind == "salu":
        if ("m0", 0) in p.wr and c.lds_dma: n = max(n, 1)
    if p.kind == "vmem" and p.wide:
        data = {r for r in p.rd if isv(r)}
        if data & c.wr: n = max(n, 2)
    if p.kind == "lds" and p.mn.startswith("ds_write") and ("b128" in p.mn or "b96" in p.mn):
        data = {r for r in p.rd if isv(r)}
        if data & c.wr: n = max(n, 2)
    return n

class Asm:
    def __init__(self):
        self.out = []
        self.vm = []
        self.lg = []
        self.nid = 0
        self.hist = []

    def _push(self, ins):
        self.out.append(ins)
        self.hist.append(ins)
        if len(self.hist) > 24: self.hist.pop(0)

    def raw(self, text):
        self.out.append(text)

    def label(self, name):
        self.out.append(name + ":")

    def fence(self, nops=True):
        self.waitcnt(vm=0, lgkm=0)
        if nops:
            self._push(Inst("s_nop 15"))

    def waitcnt(self, vm=None, lgkm=None):
        parts = []
        if vm is not None:
            vm = min(vm, 63)
            if len(self.vm) > vm:
                self.vm = self.vm[len(self.vm) - vm:] if vm else []
            parts.append(f"vmcnt({vm})")
        if lgkm is not None:
            lgkm = min(lgkm, 15)
            if len(self.lg) > lgkm:
                self.lg = self.lg[len(self.lg) - lgkm:] if lgkm else []
            parts.append(f"lgkmcnt({lgkm})")
        self._push(Inst("s_waitcnt " + " ".join(parts)))

    def wait_vm(self, tok):
        ids = [i for i, _ in self.vm]
        if tok in ids:
            self.waitcnt(vm=len(ids) - 1 - ids.index(tok))

    def wait_lds_all(self):
        if self.lg: self.waitcnt(lgkm=0)

    def __call__(self, text):
        for line in text.strip().split("\n"):
            line = line.strip()
            if not line or line.startswith(";"): continue
            if line.endswith(":"):
                self.out.append(line); continue
            if line.startswith("."):
                self.out.append(line); continue
            self.emit(line)
        return self.nid - 1

    def emit(self, text):
        ins = Inst(text)
        touched = ins.rd | ins.wr
        nvm = None
        for idx, (i, wr) in enumerate(self.vm):
            if wr & (ins.rd if ";nowaw" in text else touched): nvm = len(self.vm) - 1 - idx
        nlg = None
        anysm = any(s for _, _, s in self.lg)
        tl = ins.rd if ";nowaw" in text else touched
        for idx, (i, wr, s) in enumerate(self.lg):
            if wr & tl: nlg = 0 if anysm else len(self.lg) - 1 - idx
        if ins.kind == "lds" and len(self.lg) >= 15:
            nlg = min(nlg, 14) if nlg is not None else (0 if anysm else 14)
        if nvm is not None or nlg is not None:
            self.waitcnt(vm=nvm, lgkm=nlg)
        if ins.mn == "s_waitcnt":
            m = re.search(r'vmcnt\((\d+)\)', text); vm = int(m.group(1)) if m else None
            m = re.search(r'lgkmcnt\((\d+)\)', text); lg = int(m.group(1)) if m else None
            self.waitcnt(vm=vm, lgkm=lg)
            return
        dist = 0; need = 0
        for p in reversed(self.hist):
            n = need_states(p, ins) - dist
            need = max(need, n)
            dist += p.nstates
            if dist > 20: break
        while need > 0:
            k = min(need, 16)
            self._push(Inst(f"s_nop {k-1}"))
            need -= k
        self._push(ins)
        if ins.kind == "vmem":
            self.vm.append((self.nid, ins.wr)); self.nid += 1
            assert len(self.vm) <= 63, "too many vmem ops outstanding"
        elif ins.kind == "lds":
            self.lg.append((self.nid, ins.wr, False)); self.nid += 1
        elif ins.kind == "smem":
            self.lg.append((self.nid, ins.wr, True)); self.nid += 1
        return self.nid - 1

    def mark(self):
        return len(self.out)

    def text(self, a=0, b=None):
        return "\n".join((("    " + x.text) if isinstance(x, Inst) else x) for x in self.out[a:b]) + "\n"

    def roll(self, body, n, counter, name, setup_done=False):
        segs = []
        start = self.mark()
        for it in range(n):
            a = self.mark()
            body(it)
            segs.append(self.out[a:self.mark()])
        txt = ["\n".join(x.text if isinstance(x, Inst) else x for x in s) for s in segs]
        best = (0, 0); i = 0
        while i < n:
            j = i
            while j + 1 < n and txt[j + 1] == txt[i]: j += 1
            if j - i > best[1] - best[0]: best = (i, j)
            i = j + 1
        i0, i1 = best
        new = []
        for it in range(i0): new += segs[it]
        cnt = i1 - i0 + 1
        if cnt >= 2:
            new.append(Inst(f"s_mov_b32 {counter}, {cnt}"))
            new.append(".p2align 6")
            new.append(name + ":")
            new += segs[i0]
            new.append(Inst(f"s_sub_u32 {counter}, {counter}, 1"))
            new.append(Inst(f"s_cmp_lg_u32 {counter}, 0"))
            new.append(Inst(f"s_cbranch_scc1 {name}"))
        else:
            new += segs[i0]
        for it in range(i1 + 1, n): new += segs[it]
        self.out[start:] = new
        return (i0, i1)

def interleave(main, fill, ratio=None):
    out = []
    n, m = len(main), len(fill)
    k = 0
    for i, x in enumerate(main):
        out.append(x)
        tgt = (i + 1) * m // n
        while k < tgt:
            out.append(fill[k]); k += 1
    out += fill[k:]
    return out


import os
STAMPS = os.environ.get("STAMPS", "") != ""
def stamp(a, idx, real=False):
    if not STAMPS: return
    a(f"{'s_memrealtime' if real else 's_memtime'} s[{80+2*idx}:{81+2*idx}]")
    a("s_waitcnt lgkmcnt(0)")
def stamp_flush(a, kern, wsptr, wave_sgpr, vtmp):
    if not STAMPS: return
    from layout import WS_STAMP
    a(f"""
    s_mov_b64 exec, -1
    s_add_u32 s96, s{wsptr}, {WS_STAMP + kern * 512 * 8 * 64}
    s_addc_u32 s97, s{wsptr+1}, 0
    s_mov_b32 s98, {512 * 8 * 64}
    s_mov_b32 s99, 0x00020000
    s_lshl_b32 s79, s2, 3
    s_add_u32 s79, s79, s{wave_sgpr}
    s_lshl_b32 s79, s79, 6
    v_mov_b32 v{vtmp}, 0
    """)
    for i in range(8):
        a(f"v_mov_b32 v{vtmp+1}, s{80+2*i}")
        a(f"buffer_store_dword v{vtmp+1}, v{vtmp}, s[96:99], s79 offen offset:{4*i}")
    a("s_waitcnt vmcnt(0)")
```

```python
from asmlib import *
from layout import *
from k2 import srd, vpi, M32, M16, R
import os, math, struct
EXP = os.environ.get('K1EXP', '')

def f32h(x): return "0x%08x" % struct.unpack("<I", struct.pack("<f", x))[0]
LOG2E = math.log2(math.e)
GC1 = -2.0 * math.sqrt(2.0 / math.pi) * LOG2E
GC2 = GC1 * 0.044715
CQ = LOG2E / math.sqrt(18.0)

def x_dma_setup(a, vDX):
    srd(a, 16, 8, 0, 2048 * 1152)
    a(f"""
    s_lshl_b32 s26, s5, 7
    s_lshl_b32 s27, s6, 5
    s_add_u32 s26, s26, s27
    v_lshrrev_b32 v4, 3, v0
    v_and_b32 v5, 7, v0
    s_lshl_b32 s55, s6, 12
    s_mov_b32 s56, 0
    s_movk_i32 s28, 1152
    """)
    for j in range(4):
        a(f"""
        v_add_u32 v6, {8*j}, v4
        v_bfe_u32 v7, v6, 1, 3
        v_xor_b32 v7, v7, v5
        v_add_u32 v6, s26, v6
        v_mul_lo_u32 v6, v6, s28
        v_lshl_add_u32 v6, v7, 4, v6
        v_subrev_u32 v{vDX+j}, {1024*j}, v6
        """)
def x_dma(vDX, lds):
    return [f"s_add_u32 m0, s55, {lds}"] + \
           [f"buffer_load_dwordx4 v{vDX+j}, s[16:19], s56 offen offset:{1024*j} lds" for j in range(4)] + ["s_add_u32 s56, s56, 128"]
def x_read_setup(a, vX, rowbase_sgpr):
    a("v_and_b32 v8, 31, v0")
    vpi(a, 9, 8, 10)
    a(f"""
    v_lshrrev_b32 v10, 5, v0
    v_bfe_u32 v11, v9, 1, 3
    v_xor_b32 v11, v11, v10
    v_lshlrev_b32 v11, 4, v11
    v_lshl_add_u32 v11, v9, 7, v11
    v_add_u32 v{vX}, s{rowbase_sgpr}, v11
    v_xor_b32 v{vX+1}, 32, v{vX}
    v_xor_b32 v{vX+2}, 64, v{vX}
    v_xor_b32 v{vX+3}, 96, v{vX}
    """)

def emit_mix(a, mf, fill, tok=None):
    seq = []
    n, m = len(mf), len(fill); k = 0
    for i, x in enumerate(mf):
        seq.append(x)
        tgt = min(m, (i + 1) * m // max(1, n - 1)) if n > 1 else m
        while k < tgt or (0 < k < m and (fill[k-1].startswith("s_mov_b64 exec, s") or fill[k].startswith("s_mov_b64 exec, -1"))):
            seq.append(fill[k]); k += 1
    seq += fill[k:]
    last = None
    for x in seq:
        t = a(x)
        if x.endswith(" lds"): last = t
    return last

def gelu(a, regs, T, cv):
    prs = [regs[i] for i in range(0, len(regs), 2)]
    for g in range(0, len(prs), 4):
        grp = prs[g:g + 4]
        for k, r in enumerate(grp): a(f"v_pk_mul_f32 {R(T+2*k,2)}, {R(r,2)}, {R(r,2)}")
        for k, r in enumerate(grp): a(f"v_pk_fma_f32 {R(T+2*k,2)}, {R(T+2*k,2)}, {R(cv,2)}, {R(cv+2,2)}")
        for k, r in enumerate(grp): a(f"v_pk_mul_f32 {R(T+2*k,2)}, {R(T+2*k,2)}, {R(r,2)}")
        for k in range(2 * len(grp)): a(f"v_exp_f32 v{T+k}, v{T+k}")
        for k, r in enumerate(grp): a(f"v_pk_add_f32 {R(T+2*k,2)}, {R(T+2*k,2)}, 1.0 op_sel_hi:[1,0]")
        for k in range(2 * len(grp)): a(f"v_rcp_f32 v{T+k}, v{T+k}")
        for k, r in enumerate(grp): a(f"v_pk_mul_f32 {R(r,2)}, {R(r,2)}, {R(T+2*k,2)}")

ZSL = 40960
def gen_z(a, name, is2):
    ACC = 16
    XF = 112
    WF = 128
    vX, vW, vDX, vDW = 152, 156, 160, 164
    T = 168; CV = 176
    x_dma_setup(a, vDX)
    srd(a, 20, 12, 0, 576 * 9216)
    a(f"""
    s_mul_i32 s26, s7, 384
    s_add_u32 s26, s26, {4608 if is2 else 0}
    s_lshl_b32 s27, s6, 4
    s_movk_i32 s28, 9216
    v_lshlrev_b32 v6, 1, v4
    v_and_b32 v6, 4, v6
    v_xor_b32 v6, v6, v5
    v_lshlrev_b32 v6, 4, v6
    v_add_u32 v6, s26, v6
    v_add_u32 v7, s27, v4
    v_mul_lo_u32 v7, v7, s28
    v_add_u32 v{vDW}, v7, v6
    v_add_u32 v{vDW+1}, {8*9216-1024}, v{vDW}
    s_lshl_b32 s54, s6, 11
    s_add_u32 s54, s54, 16384
    s_mov_b32 s57, 0
    s_mov_b32 s58, 128
    s_mov_b32 s59, 256
    """)
    def loads(S):
        sl = (S % 2) * ZSL
        L = x_dma(vDX, sl)
        for un in range(3):
            L.append(f"s_add_u32 m0, s54, {sl + un*8192}")
            L.append(f"buffer_load_dwordx4 v{vDW}, s[20:23], s{57+un} offen lds")
            L.append(f"buffer_load_dwordx4 v{vDW+1}, s[20:23], s{57+un} offen offset:1024 lds")
            L.append(f"s_add_u32 s{57+un}, s{57+un}, {64*9216}")
        return L
    tok = {}
    for S in range(2): tok[S] = emit_mix(a, loads(S), [])
    a("s_and_b32 s29, s6, 1\ns_lshl_b32 s29, s29, 13")
    x_read_setup(a, vX, 29)
    a(f"""
    v_bfe_u32 v12, v0, 2, 2
    v_lshl_add_u32 v13, v10, 3, v12
    v_lshlrev_b32 v13, 7, v13
    v_and_b32 v14, 2, v12
    v_lshl_add_u32 v13, v14, 5, v13
    v_and_b32 v14, 16, v0
    v_lshl_add_u32 v13, v14, 1, v13
    v_and_b32 v14, 1, v0
    v_lshl_add_u32 v13, v14, 4, v13
    v_and_b32 v14, 2, v0
    v_lshl_add_u32 v13, v14, 2, v13
    s_lshr_b32 s30, s6, 1
    s_mul_i32 s31, s30, 3
    """)
    for ct in range(3):
        a(f"""
        s_add_u32 s32, s31, {ct}
        s_and_b32 s33, s32, 1
        s_lshl_b32 s33, s33, 6
        s_lshr_b32 s32, s32, 1
        s_lshl_b32 s32, s32, 13
        s_add_u32 s32, s32, 16384
        v_xor_b32 v14, s33, v13
        v_add_u32 v{vW+ct}, s32, v14
        """)
    a(f"v_mov_b32 v{CV}, {f32h(GC2)}\nv_mov_b32 v{CV+1}, {f32h(GC2)}\nv_mov_b32 v{CV+2}, {f32h(GC1)}\nv_mov_b32 v{CV+3}, {f32h(GC1)}")
    def reads(U):
        S, u = U // 4, U % 4; sl = (S % 2) * ZSL
        L = [f"ds_read_b128 {R(XF+(U%2)*8+4*rg,4)}, v{vX+u} offset:{sl+rg*4096}" for rg in range(2)]
        for ct in range(3):
            for t in range(2):
                L.append(f"ds_read_b64_tr_b16 {R(WF+(U%2)*12+4*ct+2*t,2)}, v{vW+ct} offset:{sl+u*2048+t*512}")
        return L
    def mfmas(U):
        L = []
        for ct in range(3):
            for rg in range(2):
                c = ACC + (rg * 3 + ct) * 16
                xf, wf = R(XF + (U % 2) * 8 + 4 * rg, 4), R(WF + (U % 2) * 12 + 4 * ct, 4)
                A, B = (xf, wf) if is2 else (wf, xf)
                L.append(f"{M32} {R(c,16)}, {A}, {B}, {R(c,16) if U else 0}")
        return L
    a.wait_vm(tok[0]); a("s_barrier")
    stamp(a, 2)
    for x in reads(0): a(x)
    pend = []
    def step(U):
        S, u = U // 4, U % 4
        if u == 3 and S + 1 < 9:
            a.wait_vm(tok[S + 1]); a.wait_lds_all(); a("s_barrier")
            if S + 2 < 9: pend[:] = loads(S + 2); step.key = S + 2
        fill = reads(U + 1) if U + 1 < 36 else []
        take = pend[:9]; del pend[:9]
        while take and pend and take[-1].startswith("s_add_u32 m0"): take.append(pend.pop(0))
        t = emit_mix(a, mfmas(U), fill + take)
        if t is not None: tok[step.key] = t
    for U in range(3): step(U)
    def body(it):
        for U in range(3 + 8 * it, 11 + 8 * it): step(U)
    a.roll(body, 4, "s65", name + "_l")
    step(35)
    stamp(a, 3)
    a(f"""
    s_and_b32 s29, s6, 1
    s_lshl_b32 s32, s5, 2
    s_lshl_b32 s33, s29, 1
    s_add_u32 s32, s32, s33
    s_mul_i32 s33, s7, 6
    s_add_u32 s33, s33, s31
    """)
    if not is2:
        srd(a, 40, 14, WS_Z1, Z_BYTES)
        a(f"""
        v_lshlrev_b32 v1, 9, v10
        v_lshl_add_u32 v1, v9, 4, v1
        s_mul_i32 s34, s32, 72
        s_add_u32 s34, s34, s33
        s_lshl_b32 s34, s34, 11
        """)
        k = 0
        for rg in range(2):
            for ct in range(3):
                c = ACC + (rg * 3 + ct) * 16
                gelu(a, list(range(c, c + 16)), T, CV)
                p = XF + (k % 4) * 8; k += 1
                for i in range(8): a(f"v_cvt_pk_bf16_f32 v{p+i}, v{c+2*i}, v{c+2*i+1}")
                a(f"s_add_u32 s35, s34, {rg*72*2048 + ct*2048}")
                for j in range(2): a(f"buffer_store_dwordx4 {R(p+4*j,4)}, v1, s[40:43], s35 offen offset:{1024*j}")
    else:
        srd(a, 40, 14, WS_Z2, Z_BYTES)
        srd(a, 44, 14, WS_STAT, 16 * 24 * 1024)
        srd(a, 48, 68, 0, 256)
        S1, S2 = 180, 196
        a(f"""
        v_bfe_u32 v1, v0, 4, 1
        v_lshlrev_b32 v1, 9, v1
        v_lshl_add_u32 v1, v10, 5, v1
        v_bfe_u32 v2, v0, 3, 1
        v_lshl_add_u32 v1, v2, 6, v1
        v_bfe_u32 v2, v0, 2, 1
        v_lshl_add_u32 v1, v2, 4, v1
        v_and_b32 v2, 3, v0
        v_lshl_add_u32 v1, v2, 28, v1
        s_mul_i32 s34, s5, 24
        s_lshl_b32 s35, s7, 1
        s_add_u32 s35, s35, s30
        s_add_u32 s35, s35, s34
        s_lshl_b32 s35, s35, 10
        s_lshl_b32 s36, s29, 8
        s_add_u32 s35, s35, s36
        """)
        for rg in range(2):
            for ct in range(3):
                c = ACC + (rg * 3 + ct) * 16
                gelu(a, list(range(c, c + 16)), T, CV)
                for i in range(0, 16, 2):
                    if ct == 0:
                        a(f"v_pk_mul_f32 {R(S2+i,2)}, {R(c+i,2)}, {R(c+i,2)}")
                    else:
                        a(f"v_pk_fma_f32 {R(S2+i,2)}, {R(c+i,2)}, {R(c+i,2)}, {R(S2+i,2)}")
                        a(f"v_pk_add_f32 {R(S1+i,2)}, {R(c+i,2)}, {R(S1+i,2) if ct == 2 else R(c-16+i,2)}")
            for q in range(16): a(f"v_permlane16_swap_b32 v{S1+q}, v{S2+q}")
            for q in range(0, 16, 2): a(f"v_pk_add_f32 {R(S1+q,2)}, {R(S1+q,2)}, {R(S2+q,2)}")
            for q in range(8):
                a(f"v_add_f32_dpp v{S2+q}, v{S1+q}, v{S1+q} row_ror:8 row_mask:0xf bank_mask:0x3")
                a(f"v_add_f32_dpp v{S2+q}, v{S1+q+8}, v{S1+q+8} row_ror:8 row_mask:0xf bank_mask:0xc")
            o = XF + 4 * rg
            for q in range(4):
                a(f"v_add_f32_dpp v{o+q}, v{S2+q}, v{S2+q} row_half_mirror row_mask:0xf bank_mask:0x5")
                a(f"v_add_f32_dpp v{o+q}, v{S2+q+4}, v{S2+q+4} row_half_mirror row_mask:0xf bank_mask:0xa")
            for q in range(4): a(f"v_add_f32_dpp v{o+q}, v{o+q}, v{o+q} quad_perm:[1,0,3,2] row_mask:0xf bank_mask:0xf")
            for q in range(4): a(f"v_add_f32_dpp v{o+q}, v{o+q}, v{o+q} quad_perm:[2,3,0,1] row_mask:0xf bank_mask:0xf")
            a(f"buffer_store_dwordx4 {R(o,4)}, v1, s[44:47], s35 offen offset:{rg*128} sc0 sc1")
        a("s_waitcnt vmcnt(0)")
        a("s_barrier")
        stamp(a, 6)
        a(f"""
        s_cmp_lg_u32 s6, 0
        s_cbranch_scc1 {name}_pw
        s_lshl_b32 s36, s5, 4
        s_add_u32 s37, s36, s7
        v_mov_b32 v2, 1
        v_lshlrev_b32 v3, 28, v0
        v_min_u32 v3, 0x10000000, v3
        v_cmp_ne_u32 vcc, 0, v0
        v_mov_b32 v4, 0x40000000
        v_mov_b32 v3, 0
        v_cndmask_b32 v3, v3, v4, vcc
        buffer_store_byte v2, v3, s[48:51], s37 offen sc0 sc1
        s_mov_b32 s38, 0x40000
        v_mov_b32 v3, 0
        """)
        a.fence(nops=False)
        a.label(name + "_poll")
        a(f"""
        buffer_load_dwordx3 v[4:6], v3, s[48:51], s36 offen sc0 sc1
        v_and_b32 v4, v4, v5
        v_and_b32 v4, v4, v6
        v_readfirstlane_b32 s39, v4
        s_cmp_eq_u32 s39, 0x01010101
        s_cbranch_scc1 {name}_pw
        s_sleep 2
        s_sub_u32 s38, s38, 1
        s_cmp_lg_u32 s38, 0
        s_cbranch_scc1 {name}_poll
        """)
        a.fence(nops=False)
        a.label(name + "_pw")
        a("s_barrier")
        stamp(a, 7)
        LB = 112
        a(f"""
        v_lshrrev_b32 v2, 4, v0
        v_and_b32 v3, 15, v0
        v_lshlrev_b32 v2, 10, v2
        v_lshl_add_u32 v2, v3, 4, v2
        s_lshl_b32 s36, s34, 10
        s_lshl_b32 s37, s29, 8
        s_add_u32 s36, s36, s37
        """)
        for n in range(6):
            for st in range(2):
                a(f"buffer_load_dwordx4 {R(LB+(n*2+st)*4,4)}, v2, s[44:47], s36 offen offset:{st*512} sc0 sc1")
            a("s_add_u32 s36, s36, 4096")
        for n in range(1, 6):
            for i in range(0, 8, 2): a(f"v_pk_add_f32 {R(LB+i,2)}, {R(LB+i,2)}, {R(LB+n*8+i,2)}")
        for sw in ("v_permlane32_swap_b32", "v_permlane16_swap_b32"):
            for i in range(8): a(f"v_mov_b32 v{LB+8+i}, v{LB+i}")
            for i in range(8): a(f"{sw} v{LB+i}, v{LB+8+i}")
            for i in range(0, 8, 2): a(f"v_pk_add_f32 {R(LB+i,2)}, {R(LB+i,2)}, {R(LB+8+i,2)}")
        inv = f32h(1.0 / 2304.0)
        for i in range(4):
            a(f"v_mul_f32 v{LB+i}, {inv}, v{LB+i}")
            a(f"v_mul_f32 v{LB+4+i}, {inv}, v{LB+4+i}")
            a(f"v_fma_f32 v{LB+4+i}, -v{LB+i}, v{LB+i}, v{LB+4+i}")
            a(f"v_max_f32 v{LB+4+i}, 0, v{LB+4+i}")
            a(f"v_add_f32 v{LB+4+i}, {f32h(1e-5)}, v{LB+4+i}")
            a(f"v_rsq_f32 v{LB+4+i}, v{LB+4+i}")
        for i in range(4): a(f"v_mul_f32 v{LB+i}, -v{LB+i}, v{LB+4+i}".replace("v_mul_f32", "v_mul_f32_e64"))
        a(f"""
        s_lshl_b32 s37, s6, 9
        v_lshlrev_b32 v3, 4, v3
        v_add_u32 v3, s37, v3
        ds_write_b128 v3, {R(LB,4)}
        ds_write_b128 v3, {R(LB+4,4)} offset:256
        v_lshlrev_b32 v4, 5, v10
        v_add_u32 v4, s37, v4
        v_lshlrev_b32 v1, 4, v0
        s_lshl_b32 s34, s33, 7
        s_lshl_b32 s35, s32, 1
        s_add_u32 s34, s34, s35
        s_lshl_b32 s34, s34, 10
        s_waitcnt lgkmcnt(0)
        """)
        k = 0
        for rg in range(2):
            for j in range(2):
                for h in range(2):
                    a(f"ds_read_b128 {R(S1+8*j+4*h,4)}, v4 offset:{rg*128+j*64+h*16}")
                    a(f"ds_read_b128 {R(S2+8*j+4*h,4)}, v4 offset:{256+rg*128+j*64+h*16}")
            for ct in range(3):
                c = ACC + (rg * 3 + ct) * 16
                p = 120 + (k % 4) * 8; k += 1
                for i in range(0, 16, 2):
                    a(f"v_pk_fma_f32 {R(c+i,2)}, {R(c+i,2)}, {R(S2+i,2)}, {R(S1+i,2)}")
                for i in range(8): a(f"v_cvt_pk_bf16_f32 v{p+i}, v{c+2*i}, v{c+2*i+1}")
                a(f"s_add_u32 s35, s34, {ct*128*1024 + rg*2048}")
                for j in range(2): a(f"buffer_store_dwordx4 {R(p+4*j,4)}, v1, s[40:43], s35 offen offset:{1024*j}")
    if STAMPS: a("s_waitcnt vmcnt(0)")
    stamp(a, 4); stamp(a, 5, True); stamp_flush(a, 0, 14, 6, 0)
    a("s_endpgm")

def w36_setup(a, vDW, isv):
    srd(a, 20, 10, 0, 576 * 3456)
    a(f"""
    s_mul_i32 s26, s7, 288
    s_add_u32 s26, s26, {2304 if isv else 0}
    s_movk_i32 s28, 3456
    s_mul_i32 s54, s6, 4608
    s_mov_b32 s57, 4096
    s_mov_b64 s[52:53], 0xffffffff
    """)
    for j in range(5):
        a(f"""
        v_add_u32 v6, {64*j}, v0
        v_mul_u32_u24 v7, 1821, v6
        v_lshrrev_b32 v7, 16, v7
        v_mul_u32_u24 v11, 36, v7
        v_sub_u32 v6, v6, v11
        v_cmp_lt_u32 vcc, 17, v6
        v_cndmask_b32 v11, 0, 1, vcc
        v_mul_u32_u24 v12, 18, v11
        v_sub_u32 v6, v6, v12
        s_lshl_b32 s27, s6, 3
        v_add_u32 v7, s27, v7
        """.replace("v_cndmask_b32 v11, 0, 1, vcc", "v_cndmask_b32_e64 v11, 0, 1, vcc"))
        if isv:
            a("""
            v_lshrrev_b32 v12, 2, v7
            v_lshl_add_u32 v7, v12, 2, v7
            v_lshl_add_u32 v7, v11, 2, v7
            v_mul_lo_u32 v7, v7, s28
            """)
        else:
            a("""
            v_mul_lo_u32 v7, v7, s28
            v_mul_u32_u24 v12, 1152, v11
            v_add_u32 v7, v7, v12
            """)
        a(f"""
        v_lshl_add_u32 v7, v6, 4, v7
        v_add_u32 v7, s26, v7
        v_subrev_u32 v{vDW+j}, {1024*j if j < 4 else 0}, v7
        """)
    a("s_mov_b32 s57, 0")
def w36_dma(vDW, lds, rows):
    return [f"s_add_u32 m0, s54, {lds}"] + \
           [f"buffer_load_dwordx4 v{vDW+j}, s[20:23], s57 offen offset:{1024*j} lds" for j in range(4)] + \
           [f"s_add_u32 m0, s54, {lds+4096}", "s_mov_b64 exec, s[52:53]",
            f"buffer_load_dwordx4 v{vDW+4}, s[20:23], s57 offen lds", "s_mov_b64 exec, -1", f"s_add_u32 s57, s57, {rows*3456}"]

def gen_qk(a, name):
    ACC = 16
    XF = 160
    WF = 168
    vX, vW, vWb, vDX, vDW = 240, 244, 245, 246, 250
    WB = 32768; WS_ = 18432
    x_dma_setup(a, vDX)
    w36_setup(a, vDW, False)
    tx, tw = {}, {}
    tx[0] = emit_mix(a, x_dma(vDX, 0), [])
    tw[0] = emit_mix(a, w36_dma(vDW, WB, 32), [])
    tw[1] = emit_mix(a, w36_dma(vDW, WB + WS_, 32), [])
    tx[1] = emit_mix(a, x_dma(vDX, 16384), [])
    x_read_setup(a, vX, 55)
    a(f"""
    v_bfe_u32 v12, v0, 2, 2
    v_lshl_add_u32 v13, v10, 3, v12
    v_mul_u32_u24 v13, 576, v13
    v_bfe_u32 v14, v0, 4, 1
    v_mul_u32_u24 v14, 288, v14
    v_add_u32 v13, v13, v14
    v_add_u32 v13, {WB}, v13
    v_and_b32 v14, 3, v0
    v_mul_u32_u24 v15, 72, v14
    v_add_u32 v{vWb}, v13, v15
    v_add_u32 v{vWb}, 32, v{vWb}
    v_and_b32 v14, 1, v0
    v_lshl_add_u32 v13, v14, 4, v13
    v_and_b32 v14, 2, v0
    v_lshl_add_u32 v{vW}, v14, 2, v13
    """)
    def reads(U):
        S, u = U // 4, U % 4; H, up = U // 2, U % 2
        L = [f"ds_read_b128 {R(XF+(U%2)*4,4)}, v{vX+u} offset:{(S%2)*16384}"]
        base = (H % 2) * WS_ + up * 9216
        for h in range(9):
            for t in range(2):
                if h < 8: L.append(f"ds_read_b64_tr_b16 {R(WF+(U%2)*36+4*h+2*t,2)}, v{vW} offset:{base+t*2304+36*h+(4 if h%2 else 0)}")
                else: L.append(f"ds_read_b64_tr_b16 {R(WF+(U%2)*36+4*h+2*t,2)}, v{vWb} offset:{base+t*2304}")
        return L
    def mfmas(U):
        return [f"{M32} {R(ACC+16*h,16)}, {R(WF+(U%2)*36+4*h,4)}, {R(XF+(U%2)*4,4)}, {R(ACC+16*h,16) if U else 0}" for h in range(9)]
    a.wait_vm(tw[0]); a("s_barrier")
    stamp(a, 2)
    for x in reads(0): a(x)
    def step(U):
        S, u = U // 4, U % 4; H, up = U // 2, U % 2
        ld = []
        if up == 1 and H + 1 < 18:
            a.wait_vm(tw[H + 1])
            if u == 3: a.wait_vm(tx[S + 1])
            a.wait_lds_all(); a("s_barrier")
        fill = reads(U + 1) if U + 1 < 36 else []
        if up == 1 and H + 2 < 18:
            t = emit_mix(a, mfmas(U), w36_dma(vDW, WB + (H % 2) * WS_, 32) + fill); tw[H + 2] = t
        elif u == 0 and S >= 1 and S + 1 < 9:
            t = emit_mix(a, mfmas(U), fill + x_dma(vDX, ((S + 1) % 2) * 16384)); tx[S + 1] = t
        else:
            emit_mix(a, mfmas(U), fill)
    for U in range(3): step(U)
    def body(it):
        for U in range(3 + 8 * it, 11 + 8 * it): step(U)
    a.roll(body, 4, "s65", name + "_l")
    step(35)
    stamp(a, 3)
    srd(a, 40, 14, WS_QA, WS_GATE - WS_QA)
    srd(a, 44, 14, WS_KV, KV_BYTES)
    a(f"""
    s_lshl_b32 s32, s5, 2
    s_add_u32 s32, s32, s6
    s_lshl_b32 s33, s7, 9
    s_add_u32 s33, s33, s32
    s_lshl_b32 s34, s33, 10
    s_mul_i32 s35, s33, {KV_TILE}
    s_lshl_b32 s36, s33, 7
    s_add_u32 s36, s36, {WS_QB - WS_QA}
    s_add_u32 s37, s35, {KV_KB}
    v_lshlrev_b32 v1, 9, v10
    v_lshl_add_u32 v1, v9, 4, v1
    v_lshlrev_b32 v2, 4, v0
    v_lshlrev_b32 v3, 14, v10
    v_lshl_add_u32 v3, v9, 2, v3
    s_mov_b32 s38, {2*64*KV_TILE}
    v_mul_lo_u32 v4, v10, s38
    v_lshl_add_u32 v4, v8, 2, v4
    v_mov_b32 v6, {f32h(CQ)}
    v_mov_b32 v7, {f32h(CQ)}
    """)
    for h in range(9):
        c = ACC + 16 * h
        p = WF + (h % 4) * 8
        for i in range(0, 8, 2): a(f"v_pk_mul_f32 {R(c+i,2)}, {R(c+i,2)}, v[6:7]")
        for i in range(8): a(f"v_cvt_pk_bf16_f32 v{p+i}, v{c+2*i}, v{c+2*i+1}")
        if h < 8:
            a(f"buffer_store_dwordx4 {R(p,4)}, v1, s[40:43], s34 offen")
            a(f"buffer_store_dwordx4 {R(p+4,4)}, v2, s[44:47], s35 offen")
            a(f"s_add_u32 s34, s34, {64*1024}\ns_add_u32 s35, s35, {64*KV_TILE}")
        else:
            for aa in range(2):
                for eo in range(2):
                    hh = 4 * aa + eo
                    a(f"s_add_u32 s38, s36, {hh*8192}\ns_add_u32 s39, s37, {hh*64*KV_TILE}")
                    a(f"buffer_store_dword v{p+2*aa+eo}, v3, s[40:43], s38 offen")
                    a(f"buffer_store_dword v{p+4+2*aa+eo}, v4, s[44:47], s39 offen")
    if STAMPS: a("s_waitcnt vmcnt(0)")
    stamp(a, 4); stamp(a, 5, True); stamp_flush(a, 0, 14, 6, 0)
    a("s_endpgm")

def gen_v(a, name):
    ACC = 16
    XF = 96
    WF = 104
    vX, vW, vG, vDX, vDW = 144, 148, 149, 150, 154
    SL = 16384 + 18432; GB = 2 * SL
    x_dma_setup(a, vDX)
    w36_setup(a, vDW, True)
    srd(a, 48, 66, 0, 1152)
    def loads(S):
        return x_dma(vDX, (S % 2) * SL) + w36_dma(vDW, (S % 2) * SL + 16384, 64)
    tok = {}
    a(f"""
    v_lshlrev_b32 v2, 4, v0
    s_mov_b32 m0, {GB}
    buffer_load_dwordx4 v2, s[48:51], 0 offen lds
    buffer_load_dwordx4 v2, s[48:51], 0 offen offset:1024 lds
    """)
    for S in range(2): tok[S] = emit_mix(a, loads(S), [])
    x_read_setup(a, vX, 55)
    a(f"""
    v_bfe_u32 v12, v0, 2, 2
    v_lshl_add_u32 v13, v10, 2, v12
    v_mul_u32_u24 v13, 576, v13
    v_and_b32 v14, 16, v0
    v_lshl_add_u32 v13, v14, 1, v13
    v_and_b32 v14, 3, v0
    v_lshl_add_u32 v13, v14, 3, v13
    v_add_u32 v{vW}, 16384, v13
    v_lshlrev_b32 v{vG}, 4, v10
    v_add_u32 v{vG}, {GB}, v{vG}
    s_mov_b32 s60, 0xffff0000
    s_mov_b32 s61, 0xffff0000
    """)
    def reads(U):
        S, u = U // 4, U % 4; sl = (S % 2) * SL
        L = [f"ds_read_b128 {R(XF+(U%2)*4,4)}, v{vX+u} offset:{sl}"]
        for T in range(5):
            for t in range(2):
                L.append(f"ds_read_b64_tr_b16 {R(WF+(U%2)*20+4*T+2*t,2)}, v{vW} offset:{sl+u*4608+t*288+T*64}")
        L += ["s_mov_b64 exec, s[60:61]", f"ds_read_b128 {R(WF+(U%2)*20+16,4)}, v{vG} offset:{(U%8)*32} ;nowaw", "s_mov_b64 exec, -1"]
        if U % 8 == 7: L.append(f"v_add_u32 v{vG}, 256, v{vG}")
        return L
    def mfmas(U):
        return [f"{M32} {R(ACC+16*T,16)}, {R(XF+(U%2)*4,4)}, {R(WF+(U%2)*20+4*T,4)}, {R(ACC+16*T,16) if U else 0}" for T in range(5)]
    a.wait_vm(tok[0]); a("s_barrier")
    stamp(a, 2)
    for x in reads(0): a(x)
    pend = []
    def step(U):
        S, u = U // 4, U % 4
        if u == 3 and S + 1 < 9:
            a.wait_vm(tok[S + 1]); a.wait_lds_all(); a("s_barrier")
            if S + 2 < 9: pend[:] = loads(S + 2); step.key = S + 2
        fill = reads(U + 1) if U + 1 < 36 else []
        n = 6 if len(pend) > 10 else len(pend)
        take = pend[:n]; del pend[:n]
        t = emit_mix(a, mfmas(U), fill + take)
        if t is not None: tok[step.key] = t
    for U in range(3): step(U)
    def body(it):
        for U in range(3 + 8 * it, 11 + 8 * it): step(U)
    a.roll(body, 4, "s65", name + "_l")
    step(35)
    stamp(a, 3)
    srd(a, 44, 14, WS_KV, KV_BYTES)
    srd(a, 40, 14, WS_GATE, 8192)
    a(f"""
    s_lshl_b32 s32, s5, 2
    s_add_u32 s32, s32, s6
    s_lshl_b32 s33, s7, 9
    s_add_u32 s33, s33, s32
    s_mul_i32 s35, s33, {KV_TILE}
    s_add_u32 s35, s35, {KV_V}
    s_mov_b32 s38, {64*KV_TILE}
    v_mul_u32_u24 v5, {KV_VR}, v10
    """)
    for T in range(5):
        c = ACC + 16 * T
        p = WF + (T % 4) * 8
        a(f"""
        v_add_u32 v1, {32*T}, v8
        v_mul_u32_u24 v2, 3641, v1
        v_lshrrev_b32 v2, 16, v2
        v_mul_u32_u24 v3, 18, v2
        v_sub_u32 v3, v1, v3
        """)
        if T == 4:
            a("""
            v_cmp_lt_u32 vcc, 15, v8
            v_and_b32 v4, 7, v8
            v_cndmask_b32 v2, v2, v4, vcc
            v_lshrrev_b32 v4, 3, v8
            v_add_u32 v4, 16, v4
            v_cndmask_b32 v3, v3, v4, vcc
            """)
        a(f"""
        v_mul_lo_u32 v2, v2, s38
        v_lshl_add_u32 v2, v3, 4, v2
        v_add_u32 v{150+T}, v2, v5
        """)
        for i in range(8): a(f"v_cvt_pk_bf16_f32 v{p+i}, v{c+2*i}, v{c+2*i+1}")
        if T == 4:
            a("""
            v_cmp_lt_u32 s[62:63], 23, v8
            v_mov_b32 v4, 0x3f803f80
            v_cndmask_b32 v4, v4, 0, s[62:63]
            """)
            for i in range(8): a(f"v_cndmask_b32 v{p+i}, v{p+i}, v4, vcc")
        for j in range(2): a(f"buffer_store_dwordx4 {R(p+4*j,4)}, v{150+T}, s[44:47], s35 offen offset:{2*KV_VR*j}")
    c = ACC + 64
    for r in range(16): a(f"v_mul_f32 v{c+r}, {f32h(-LOG2E)}, v{c+r}")
    for r in range(16): a(f"v_exp_f32 v{c+r}, v{c+r}")
    for r in range(16): a(f"v_add_f32 v{c+r}, 1.0, v{c+r}")
    for r in range(16): a(f"v_rcp_f32 v{c+r}, v{c+r}")
    a(f"""
    v_cmp_ne_u32 vcc, 16, v8
    v_lshlrev_b32 v1, 5, v10
    v_mov_b32 v2, 0x40000000
    v_cndmask_b32 v1, v1, v2, vcc
    s_lshl_b32 s36, s32, 7
    """)
    for j in range(2):
        for h in range(2):
            a(f"buffer_store_dwordx4 {R(c+8*j+4*h,4)}, v1, s[40:43], s36 offen offset:{64*j+16*h}")
    if STAMPS: a("s_waitcnt vmcnt(0)")
    stamp(a, 4); stamp(a, 5, True); stamp_flush(a, 0, 14, 6, 0)
    a("s_endpgm")

def gen_k1(name):
    a = Asm()
    a.raw(f".p2align 8\n.globl {name}\n.type {name},@function\n{name}:")
    a(f"""
    s_cmp_ge_u32 s2, 512
    s_cbranch_scc1 {name}_end
    s_load_dwordx4 s[8:11], s[0:1], 0
    s_load_dwordx2 s[12:13], s[0:1], 32
    s_load_dwordx2 s[14:15], s[0:1], 88
    s_load_dwordx2 s[66:67], s[0:1], 64
    s_load_dwordx2 s[68:69], s[0:1], 80
    s_and_b32 s3, s2, 7
    s_bfe_u32 s4, s2, 0x50003
    v_lshrrev_b32 v1, 6, v0
    v_and_b32 v0, 63, v0
    v_readfirstlane_b32 s6, v1
    s_lshr_b32 s5, s3, 2
    s_lshl_b32 s5, s5, 3
    s_lshr_b32 s24, s4, 2
    s_add_u32 s5, s5, s24
    s_and_b32 s24, s4, 3
    s_and_b32 s7, s3, 3
    """)
    stamp(a, 0, True); stamp(a, 1)
    a(f"""
    s_cmp_eq_u32 s24, 3
    s_cbranch_scc1 {name}_qkv
    s_mul_i32 s7, s7, 3
    s_add_u32 s7, s7, s24
    s_cmp_ge_u32 s2, 256
    s_cbranch_scc1 {name}_z1
    """)
    pre = a
    txt = pre.text()
    def sub(lbl, fn, head=""):
        b = Asm(); b.lg = list(pre.lg); b.hist = list(pre.hist)
        if lbl: b.label(lbl)
        if head: b(head)
        fn(b)
        return b.text()
    txt += sub(None, lambda b: gen_z(b, name + "_z2", True), "s_setprio 1" if 'prio' in EXP else "")
    txt += sub(name + "_z1", lambda b: gen_z(b, name + "_z1", False))
    txt += sub(name + "_qkv", lambda b: gen_qk(b, name + "_qk"), f"s_cmp_ge_u32 s2, 256\ns_cbranch_scc1 {name}_v")
    txt += sub(name + "_v", lambda b: gen_v(b, name + "_v"))
    txt += f"{name}_end:\n    s_endpgm\n"
    return txt, dict(name=name, vgpr=256, sgpr=102 if STAMPS else 72, grid=512, block=256, lds=81920)
```

```python
from asmlib import *
from layout import *
import os
EXP = os.environ.get('K2EXP', '')

def srd(a, d, ptr, off, nbytes):
    a(f"""
    s_add_u32 s{d}, s{ptr}, {off}
    s_addc_u32 s{d+1}, s{ptr+1}, 0
    s_mov_b32 s{d+2}, {nbytes}
    s_mov_b32 s{d+3}, 0x00020000
    """)

def vpi(a, d, s, t):
    a(f"""
    v_and_b32 v{d}, 0x33, v{s}
    v_and_b32 v{t}, 4, v{s}
    v_lshl_or_b32 v{d}, v{t}, 1, v{d}
    v_and_b32 v{t}, 8, v{s}
    v_lshrrev_b32 v{t}, 1, v{t}
    v_or_b32 v{d}, v{d}, v{t}
    """)

M32 = "v_mfma_f32_32x32x16_bf16"
M16 = "v_mfma_f32_16x16x32_bf16"
def R(b, n): return f"v[{b}:{b+n-1}]"

CH_T = 8
CH_B = CH_T * KV_TILE
def gen_attn(a, name):
    QA = [16, 20]; QB = [24, 28]; KA = [32, 36]; KB = [40, 44]; V = [48, 56]; S = [64, 80]; P = [96, 104]; O = [112, 128]
    vKA, vKB, vV, vD = 1, 2, 3, 4
    if 'aprio' in EXP: a("s_setprio 2")
    a(f"""
    s_lshl_b32 s24, s3, 2
    s_lshr_b32 s25, s4, 3
    s_add_u32 s24, s24, s25
    s_and_b32 s25, s4, 7
    """)
    srd(a, 16, 14, WS_KV, KV_BYTES)
    srd(a, 20, 14, WS_QA, WS_GATE - WS_QA)
    srd(a, 40, 14, WS_AF, AF_BYTES)
    a(f"""
    s_mul_i32 s26, s24, {64*KV_TILE}
    s_mul_i32 s27, s6, 5120
    s_add_u32 s26, s26, s27
    v_lshlrev_b32 v{vD}, 4, v0
    s_mov_b32 s28, s27
    """)
    toks = {}
    def dma(c):
        L = []
        L.append("s_mov_b32 m0, s28")
        for j in range(4):
            L.append(f"buffer_load_dwordx4 v{vD}, s[16:19], s26 offen offset:{j*1024} lds")
        L.append("s_add_u32 m0, s28, 4096")
        L.append("s_add_u32 s29, s26, 4096")
        L.append(f"buffer_load_dwordx4 v{vD}, s[16:19], s29 offen lds")
        L.append(f"s_add_u32 s26, s26, {CH_B}")
        L.append(f"s_add_u32 s28, s28, {CH_B}")
        L.append(f"s_sub_u32 s29, s28, {3*CH_B}")
        L.append(f"s_cmp_ge_u32 s28, {3*CH_B}")
        L.append("s_cselect_b32 s28, s29, s28")
        return L
    def run_dma(c):
        for x in dma(c):
            t = a(x)
            if "buffer_load" in x: toks[c] = t
    run_dma(0)
    a(f"""
    s_lshl_b32 s30, s25, 3
    s_lshl_b32 s31, s6, 1
    s_add_u32 s30, s30, s31
    s_lshl_b32 s31, s24, 6
    s_add_u32 s31, s31, s30
    s_lshl_b32 s32, s31, 10
    s_lshl_b32 s33, s31, 7
    s_add_u32 s33, s33, {WS_QB - WS_QA}
    v_and_b32 v5, 31, v0
    v_lshlrev_b32 v6, 2, v5
    v_lshrrev_b32 v7, 5, v0
    v_lshl_add_u32 v8, v7, 30, v6
    """)
    for qt in range(2):
        a(f"buffer_load_dwordx4 {R(QA[qt],4)}, v{vD}, s[20:23], s32 offen offset:{qt*1024}")
        a(f"buffer_load_dword v{QB[qt]}, v8, s[20:23], s33 offen offset:{qt*128}")
    run_dma(1)
    for qt in range(2):
        for r in range(1, 4): a(f"v_mov_b32 v{QB[qt]+r}, 0")
        a(f"v_mov_b32 v{KB[qt]+1}, 0x3f803f80")
        a(f"v_mov_b32 v{KB[qt]+2}, 0")
        a(f"v_mov_b32 v{KB[qt]+3}, 0")
        for r in range(16): a(f"v_mov_b32 v{O[qt]+r}, 0")
    a(f"v_mov_b32 v{vKA}, v{vD}")
    a(f"v_add_u32 v{vKB}, {KV_KB}, v6")
    vpi(a, 9, 5, 10)
    a(f"""
    v_cmp_lt_u32 vcc, 18, v5
    v_mov_b32 v11, 19
    v_cndmask_b32 v9, v9, v11, vcc
    v_mul_u32_u24 v10, {KV_VR}, v7
    v_lshl_add_u32 v{vV}, v9, 4, v10
    v_add_u32 v{vV}, {KV_V}, v{vV}
    """)
    a(f"s_mov_b32 s34, 0\ns_mov_b32 s35, 0\ns_mov_b32 s36, {CH_B}")
    def rdK(kt):
        o = (kt % CH_T) * KV_TILE
        return [f"ds_read_b128 {R(KA[kt%2],4)}, v{vKA} offset:{o}", f"ds_read_b32 v{KB[kt%2]}, v{vKB} offset:{o}"]
    def rdV(kt):
        o = (kt % CH_T) * KV_TILE
        return [f"ds_read_b128 {R(V[kt%2],4)}, v{vV} offset:{o}", f"ds_read_b128 {R(V[kt%2]+4,4)}, v{vV} offset:{o+2*KV_VR}"]
    def advK():
        return ["s_add_u32 s34, s34, 1", "s_cmp_eq_u32 s34, 3", f"s_cselect_b32 s37, {-2*CH_B}, s36", "s_cselect_b32 s34, 0, s34",
                f"v_add_u32 v{vKA}, s37, v{vKA}", f"v_add_u32 v{vKB}, s37, v{vKB}"]
    def advV():
        return ["s_add_u32 s35, s35, 1", "s_cmp_eq_u32 s35, 3", f"s_cselect_b32 s37, {-2*CH_B}, s36", "s_cselect_b32 s35, 0, s35",
                f"v_add_u32 v{vV}, s37, v{vV}"]
    def qk(n):
        kt, qt = n // 2, n % 2
        return [f"{M32} {R(S[n%2],16)}, {R(KA[kt%2],4)}, {R(QA[qt],4)}, 0",
                f"{M32} {R(S[n%2],16)}, {R(KB[kt%2],4)}, {R(QB[qt],4)}, {R(S[n%2],16)}"]
    def pv(n):
        kt, qt = n // 2, n % 2
        return [f"{M32} {R(O[qt],16)}, {R(V[kt%2],4)}, {R(P[n%2],4)}, {R(O[qt],16)}",
                f"{M32} {R(O[qt],16)}, {R(V[kt%2]+4,4)}, {R(P[n%2]+4,4)}, {R(O[qt],16)}"]
    def sm(n):
        s, p = S[n % 2], P[n % 2]
        L = []
        for i in range(8):
            L.append(f"v_exp_f32 v{s+2*i}, v{s+2*i}")
            L.append(f"v_exp_f32 v{s+2*i+1}, v{s+2*i+1}")
            if i > 0: L.append(f"v_cvt_pk_bf16_f32 v{p+i-1}, v{s+2*i-2}, v{s+2*i-1}")
        L.append(f"v_cvt_pk_bf16_f32 v{p+7}, v{s+14}, v{s+15}")
        return L
    a.wait_vm(toks[0])
    a("s_barrier")
    stamp(a, 2)
    for x in rdK(0): a(x)
    for x in qk(0) + qk(1): a(x)
    for qt in range(2):
        s = S[qt]
        a(f"v_max3_f32 v10, v{s}, v{s+1}, v{s+2}")
        for i in range(3, 15, 2): a(f"v_max3_f32 v10, v{s+i}, v{s+i+1}, v10")
        a(f"v_max_f32 v10, v{s+15}, v10")
        a(f"""
        v_mov_b32 v11, v10
        v_permlane32_swap_b32 v10, v11
        v_max_f32 v10, v10, v11
        v_sub_f32 v10, 0, v10
        v_and_b32 v11, 0xffff0000, v10
        v_sub_f32 v12, v10, v11
        v_cvt_pk_bf16_f32 v12, v11, v12
        v_cmp_gt_u32 vcc, 32, v0
        v_mov_b32 v11, 0
        v_cndmask_b32 v{QB[qt]+1}, v11, v12, vcc
        """)
    for x in qk(0): a(x)
    NT = 128
    def slot(n):
        kt = n // 2
        pre = []
        fill = []
        if n % 2 == 0:
            if kt % CH_T == CH_T - 1 and kt + 1 < 64:
                c = kt // CH_T + 1
                a.wait_vm(toks[c])
                a("s_barrier")
                pre += advK()
                if c + 1 < 8: fill = ("dma", c + 1)
            if kt + 1 < 64: pre += rdK(kt + 1)
            pre += rdV(kt)
        LAG = int(os.environ.get("LAG", "2"))
        s_, p_ = S[n % 2], P[n % 2]; s1, p1 = S[(n - 1) % 2], P[(n - 1) % 2]
        q_ = qk(n + 1) if n + 1 < NT else [None, None]
        v_ = pv(n - 1) if n > 0 else [None, None]
        at = {0: v_[0], 2 * LAG: q_[0], 2 * LAG + 4: q_[1], 12 if LAG <= 2 else 14: v_[1]}
        seq = []
        extra = list(pre)
        dm = dma(fill[1]) if fill else []
        for e in range(16):
            if at.get(e): seq.append(at[e])
            seq.append(f"v_exp_f32 v{s_+e}, v{s_+e}")
            if e % 2 == 1:
                i = e // 2 - LAG
                if i >= 0: seq.append(f"v_cvt_pk_bf16_f32 v{p_+i}, v{s_+2*i}, v{s_+2*i+1}")
                elif n > 0: seq.append(f"v_cvt_pk_bf16_f32 v{p1+8+i}, v{s1+2*(8+i)}, v{s1+2*(8+i)+1}")
            if extra: seq.append(extra.pop(0))
            elif dm: seq.append(dm.pop(0))
        seq += extra + dm
        if n == NT - 1:
            for i in range(8 - LAG, 8): seq.append(f"v_cvt_pk_bf16_f32 v{p_+i}, v{s_+2*i}, v{s_+2*i+1}")
        if n % 2 == 0 and kt % CH_T == CH_T - 1: seq += advV()
        for x in seq:
            t = a(x)
            if "buffer_load" in x: toks[fill[1]] = t
    def body(c):
        for n in range(16 * c, 16 * c + 16): slot(n)
    a.roll(body, 8, "s38", name + "_al")
    for x in pv(NT - 1): a(x)
    stamp(a, 3)
    a("v_mov_b32 v10, 0")
    for qt in range(2):
        a(f"v_mul_f32 v11, 0x4d800000, v{O[qt]+10}")
        a("v_fma_f32 v10, v11, 0, v10")
        for r in range(10): a(f"v_fma_f32 v10, v{O[qt]+r}, 0, v10")
    a("v_cmp_u_f32 vcc, v10, v10")
    if 'forcefb' in EXP: a(f"s_branch {name}_fb")
    a(f"s_cbranch_vccnz {name}_fb")
    a.label(name + "_fin")
    a.fence()
    a(f"""
    s_mul_i32 s32, s30, {360*512}
    s_lshl_b32 s33, s24, 10
    s_add_u32 s33, s33, s32
    s_lshr_b32 s34, s24, 2
    s_lshl_b32 s34, s34, 9
    s_add_u32 s34, s34, {64*512}
    s_add_u32 s34, s34, s32
    s_and_b32 s35, s24, 3
    s_lshl_b32 s35, s35, 2
    s_add_u32 s34, s34, s35
    v_lshlrev_b32 v9, 4, v5
    v_lshl_add_u32 v9, v7, 30, v9
    """)
    for qt in range(2):
        o = O[qt]
        a(f"""
        v_mov_b32 v10, v{o+10}
        v_mov_b32 v11, v{o+10}
        v_permlane32_swap_b32 v10, v11
        v_rcp_f32 v10, v10
        """)
        for r in range(10): a(f"v_mul_f32 v{o+r}, v10, v{o+r}")
        for r in range(5): a(f"v_cvt_pk_bf16_f32 v{P[qt]+r}, v{o+2*r}, v{o+2*r+1}")
        a(f"buffer_store_dwordx4 {R(P[qt],4)}, v{vD}, s[40:43], s33 offen")
        a(f"buffer_store_dword v{P[qt]+4}, v9, s[40:43], s34 offen")
        if qt == 0:
            a(f"s_add_u32 s33, s33, {360*512}\ns_add_u32 s34, s34, {360*512}")
    if STAMPS: a("s_waitcnt vmcnt(0)")
    stamp(a, 4); stamp(a, 5, True); stamp_flush(a, 1, 14, 6, 0)
    a("s_endpgm")
    a.label(name + "_fb")
    a.fence()
    MX = [12, 13]
    a(f"""
    s_mul_i32 s26, s24, {64*KV_TILE}
    v_add_u32 v{vKB}, {KV_KB}, v6
    v_mul_u32_u24 v10, {KV_VR}, v7
    v_lshl_add_u32 v{vV}, v9, 4, v10
    v_add_u32 v{vV}, {KV_V}, v{vV}
    v_mov_b32 v{QB[0]+1}, 0
    v_mov_b32 v{QB[1]+1}, 0
    v_mov_b32 v12, 0xff800000
    v_mov_b32 v13, 0xff800000
    s_mov_b32 s29, s26
    s_mov_b32 s38, 64
    """)
    a.label(name + "_fb1")
    a(f"buffer_load_dwordx4 {R(KA[0],4)}, v{vD}, s[16:19], s29 offen")
    a(f"buffer_load_dword v{KB[0]}, v{vKB}, s[16:19], s29 offen")
    for x in qk(0) + qk(1): a(x)
    for qt in range(2):
        for i in range(0, 16, 2): a(f"v_max3_f32 v{MX[qt]}, v{S[qt]+i}, v{S[qt]+i+1}, v{MX[qt]}")
    a(f"s_add_u32 s29, s29, {KV_TILE}\ns_sub_u32 s38, s38, 1\ns_cmp_lg_u32 s38, 0")
    a.fence()
    a(f"s_cbranch_scc1 {name}_fb1")
    for qt in range(2):
        a(f"v_mov_b32 v11, v{MX[qt]}\nv_permlane32_swap_b32 v{MX[qt]}, v11\nv_max_f32 v{MX[qt]}, v{MX[qt]}, v11")
        for r in range(16): a(f"v_mov_b32 v{O[qt]+r}, 0")
    a("s_mov_b32 s29, s26\ns_mov_b32 s38, 64")
    a.fence()
    a.label(name + "_fb2")
    a(f"buffer_load_dwordx4 {R(KA[0],4)}, v{vD}, s[16:19], s29 offen")
    a(f"buffer_load_dword v{KB[0]}, v{vKB}, s[16:19], s29 offen")
    a(f"buffer_load_dwordx4 {R(V[0],4)}, v{vV}, s[16:19], s29 offen")
    a(f"buffer_load_dwordx4 {R(V[0]+4,4)}, v{vV}, s[16:19], s29 offen offset:{2*KV_VR}")
    for x in qk(0) + qk(1): a(x)
    for qt in range(2):
        for r in range(16): a(f"v_sub_f32 v{S[qt]+r}, v{S[qt]+r}, v{MX[qt]}")
        for x in sm(qt): a(x)
        for x in pv(qt): a(x)
    a(f"s_add_u32 s29, s29, {KV_TILE}\ns_sub_u32 s38, s38, 1\ns_cmp_lg_u32 s38, 0")
    a.fence()
    a(f"s_cbranch_scc1 {name}_fb2")
    a(f"s_branch {name}_fin")

GSL = 18432
def gen_spat(a, name):
    ACC = 16
    ACX = 80
    ZR = 88
    B32 = 152
    B16 = 184
    A16 = 200
    vB32, vB16, vZX = 208, 216, 220
    vDZ, vDX, vDW = 222, 223, 224
    Z1 = ZR
    if 'gprio' in EXP: a("s_setprio 2")
    a(f"""
    s_lshr_b32 s24, s3, 2
    s_lshl_b32 s24, s24, 3
    s_lshr_b32 s25, s4, 2
    s_add_u32 s24, s24, s25
    s_and_b32 s25, s3, 3
    s_lshl_b32 s25, s25, 2
    s_and_b32 s26, s4, 3
    s_add_u32 s25, s25, s26
    """)
    srd(a, 20, 8, 0, 2048 * 4096)
    a(f"""
    s_lshl_b32 s26, s24, 7
    s_lshl_b32 s27, s6, 5
    s_add_u32 s26, s26, s27
    v_lshrrev_b32 v4, 3, v0
    v_and_b32 v5, 7, v0
    s_lshl_b32 s55, s6, 12
    s_mov_b32 s57, 0
    """)
    for j in range(4):
        a(f"""
        v_add_u32 v6, {8*j}, v4
        v_bfe_u32 v7, v6, 1, 3
        v_xor_b32 v7, v7, v5
        v_add_u32 v6, s26, v6
        v_lshlrev_b32 v6, 12, v6
        v_lshl_add_u32 v6, v7, 4, v6
        v_subrev_u32 v{vDW+j}, {1024*j}, v6
        """)
    srd(a, 16, 14, WS_Z2, Z_BYTES)
    a(f"""
    s_lshl_b32 s26, s25, 2
    s_add_u32 s26, s26, s6
    s_lshl_b32 s26, s26, 17
    v_lshlrev_b32 v1, 4, v0
    v_add_u32 v{vDZ}, s26, v1
    s_lshr_b32 s26, s25, 1
    s_add_u32 s26, s26, 64
    s_lshl_b32 s26, s26, 17
    s_and_b32 s27, s25, 1
    s_lshl_b32 s27, s27, 8
    s_add_u32 s26, s26, s27
    s_lshl_b32 s27, s6, 10
    s_add_u32 s26, s26, s27
    v_lshrrev_b32 v2, 4, v0
    v_and_b32 v3, 15, v0
    v_lshlrev_b32 v4, 9, v2
    v_lshl_add_u32 v4, v3, 4, v4
    v_add_u32 v{vDX}, s26, v4
    s_lshl_b32 s54, s6, 9
    s_add_u32 s54, s54, 16384
    s_mov_b32 s56, 0
    s_mov_b64 s[52:53], 0xffffffff
    """)
    tw = {}
    def loads(J):
        sl = (J % 4) * GSL
        L = [f"s_add_u32 m0, s55, {sl}"]
        L += [f"buffer_load_dwordx4 v{vDW+j}, s[20:23], s57 offen offset:{1024*j} lds" for j in range(4)]
        L += [f"s_add_u32 m0, s54, {sl}", "s_mov_b64 exec, s[52:53]",
              f"buffer_load_dwordx4 v{vDX}, s[16:19], s56 offen lds", "s_mov_b64 exec, -1"]
        L += [f"buffer_load_dwordx4 {R(ZR+(J%4)*16+4*u,4)}, v{vDZ}, s[16:19], s56 offen offset:{1024*u}" for u in range(4)]
        L += ["s_add_u32 s57, s57, 128", "s_add_u32 s56, s56, 4096"]
        return L
    def run(L, k):
        for x in L:
            t = a(x)
            if x.endswith(" lds"): tw[k] = t
    for J in range(3): run(loads(J), J)
    srd(a, 40, 14, WS_AF, AF_BYTES)
    srd(a, 44, 14, WS_Z1, Z_BYTES)
    srd(a, 48, 10, 0, 4096)
    vpi(a, 6, 3, 7)
    a(f"""
    v_lshlrev_b32 v7, 8, v2
    v_lshl_add_u32 v7, v6, 4, v7
    v_add_u32 v{vZX}, 16384, v7
    v_and_b32 v6, 31, v0
    v_lshrrev_b32 v7, 5, v0
    v_bfe_u32 v8, v6, 1, 3
    v_xor_b32 v8, v8, v7
    v_lshlrev_b32 v8, 4, v8
    v_lshl_add_u32 v{vB32}, v6, 7, v8
    v_xor_b32 v{vB32+1}, 32, v{vB32}
    v_xor_b32 v{vB32+2}, 64, v{vB32}
    v_xor_b32 v{vB32+3}, 96, v{vB32}
    v_bfe_u32 v8, v3, 1, 3
    v_xor_b32 v8, v8, v2
    v_lshlrev_b32 v8, 4, v8
    v_lshl_add_u32 v8, v3, 7, v8
    v_add_u32 v{vB16}, s55, v8
    v_xor_b32 v{vB16+1}, 64, v{vB16}
    """)
    for i in range(4): a(f"v_add_u32 v{vB32+4+i}, {2*GSL}, v{vB32+i}")
    for i in range(2): a(f"v_add_u32 v{vB16+2+i}, {2*GSL}, v{vB16+i}")
    a(f"v_add_u32 v{vZX+1}, {2*GSL}, v{vZX}")
    for r in range(72): a(f"v_mov_b32 v{ACC+r}, 0")
    NU = 128
    def reads(U):
        J, u = U // 4, U % 4
        hi = (J % 4) // 2; sl = (J % 2) * GSL
        L = [f"ds_read_b128 {R(B32+(U%2)*16+4*tl,4)}, v{vB32+4*hi+u} offset:{sl+tl*4096}" for tl in range(4)]
        if u % 2 == 0:
            v = u // 2
            L.append(f"ds_read_b128 {R(A16+4*v,4)}, v{vZX+hi} offset:{sl+v*1024}")
            L += [f"ds_read_b128 {R(B16+8*v+4*tl,4)}, v{vB16+2*hi+v} offset:{sl+tl*2048}" for tl in range(2)]
        return L
    def mfmas(U):
        J, u = U // 4, U % 4
        L = [f"{M32} {R(ACC+16*tl,16)}, {R(ZR+(J%4)*16+4*u,4)}, {R(B32+(U%2)*16+4*tl,4)}, {R(ACC+16*tl,16)}" for tl in range(4)]
        v, tl = u // 2, u % 2
        L.append(f"{M16} {R(ACX+4*tl,4)}, {R(A16+4*v,4)}, {R(B16+8*v+4*tl,4)}, {R(ACX+4*tl,4)}")
        return L
    def z1_loads():
        L = ["s_lshl_b32 s26, s24, 2",
             "s_lshl_b32 s27, s25, 2", "s_add_u32 s27, s27, s6",
             "s_mul_i32 s28, s26, 72", "s_add_u32 s28, s28, s27", "s_lshl_b32 s28, s28, 11"]
        for tl in range(4):
            for j in range(2):
                L.append(f"buffer_load_dwordx4 {R(Z1+(tl*2+j)*4,4)}, v1, s[44:47], s28 offen offset:{j*1024}")
            L.append(f"s_add_u32 s28, s28, {72*2048}")
        L += ["s_add_u32 s30, s26, s6", "s_mul_i32 s31, s30, 72", "s_add_u32 s31, s31, 64", "s_lshl_b32 s31, s31, 11",
              "s_lshl_b32 s32, s25, 10", "s_add_u32 s31, s31, s32",
              "v_lshrrev_b32 v9, 5, v0", "v_lshlrev_b32 v9, 9, v9", "v_lshl_add_u32 v9, v3, 4, v9", "v_and_b32 v10, 1, v2", "v_lshl_add_u32 v9, v10, 3, v9"]
        for tl in range(2):
            L.append(f"buffer_load_dwordx2 {R(Z1+32+2*tl,2)}, v9, s[44:47], s31 offen offset:{tl*256}")
        L += ["v_and_b32 v10, 31, v0", "v_lshlrev_b32 v10, 1, v10", "s_lshl_b32 s32, s26, 6", "v_lshlrev_b32 v11, 1, v3", "s_lshl_b32 s33, s30, 6"]
        for tl in range(4):
            L.append(f"buffer_load_ushort v{Z1+36+tl}, v10, s[48:51], s32 offen offset:{tl*64}")
        for tl in range(2):
            L.append(f"buffer_load_ushort v{Z1+40+tl}, v11, s[48:51], s33 offen offset:{tl*32}")
        return L
    a.wait_vm(tw[0])
    a("s_barrier")
    stamp(a, 2)
    for x in reads(0): a(x)
    pend = []
    def step(U):
        J, u = U // 4, U % 4
        fill = []
        if u == 3 and J + 1 < 32:
            a.wait_vm(tw[J + 1])
            a.wait_lds_all()
            a("s_barrier")
        if U + 1 < NU: fill += reads(U + 1)
        if u == 0:
            pend[:] = loads(J + 3) if J + 3 < 32 else (z1_loads() if J == 31 else [])
            pend.append(None)
            step.key = J + 3
            step.n = len(pend)
        mf = mfmas(U)
        take = []
        if u < 3:
            want = step.n * (u + 1) // 3
            while step.n - len(pend) < want and pend:
                x = pend.pop(0)
                if x is not None: take.append(x)
            while take and pend and pend[0] is not None and (take[-1].startswith("s_mov_b64 exec, s") or pend[0].startswith("s_mov_b64 exec, -1") or take[-1].startswith("s_add_u32 m0")):
                take.append(pend.pop(0))
        fill += take
        seq = []
        n, m = len(mf), len(fill); k = 0
        for i, x in enumerate(mf):
            seq.append(x)
            tgt = (i + 1) * m // n
            while k < tgt or (0 < k < m and (fill[k-1].startswith("s_mov_b64 exec, s") or fill[k].startswith("s_mov_b64 exec, -1"))):
                seq.append(fill[k]); k += 1
        seq += fill[k:]
        for x in seq:
            t = a(x)
            if x.endswith(" lds"): tw[step.key] = t
    def body(it):
        for U in range(16 * it, 16 * it + 16): step(U)
    a.roll(body, 8, "s65", name + "_gl")
    stamp(a, 3)
    for i in range(6): a(f"v_lshlrev_b32 v{Z1+36+i}, 16, v{Z1+36+i}")
    a(f"""
    s_mul_i32 s34, s26, {360*512}
    s_lshl_b32 s35, s27, 11
    s_add_u32 s34, s34, s35
    s_add_u32 s34, s34, {72*512}
    s_mul_i32 s36, s30, {360*512}
    s_lshl_b32 s37, s25, 10
    s_add_u32 s36, s36, s37
    s_add_u32 s36, s36, {(72+256)*512}
    """)
    T = B32
    def fin(c, z, nb, bias, t):
        for p in range(nb):
            a(f"v_lshlrev_b32 v{t+8}, 16, v{z+p}")
            a(f"v_and_b32 v{t+9}, 0xffff0000, v{z+p}")
            a(f"v_add_f32 v{c+2*p}, v{bias}, v{c+2*p}")
            a(f"v_add_f32 v{c+2*p+1}, v{bias}, v{c+2*p+1}")
            a(f"v_mul_f32 v{c+2*p}, v{t+8}, v{c+2*p}")
            a(f"v_mul_f32 v{c+2*p+1}, v{t+9}, v{c+2*p+1}")
            a(f"v_cvt_pk_bf16_f32 v{t+p}, v{c+2*p}, v{c+2*p+1}")
    k = 0
    for tl in range(4):
        for j in range(2):
            t = T + (k % 4) * 12; k += 1
            fin(ACC + tl * 16 + 8 * j, Z1 + (tl * 2 + j) * 4, 4, Z1 + 36 + tl, t)
            a(f"buffer_store_dwordx4 {R(t,4)}, v1, s[40:43], s34 offen offset:{j*1024}")
        a(f"s_add_u32 s34, s34, {360*512}")
    for tl in range(2):
        t = T + (k % 4) * 12; k += 1
        fin(ACX + 4 * tl, Z1 + 32 + 2 * tl, 2, Z1 + 40 + tl, t)
        a(f"buffer_store_dwordx2 {R(t,2)}, v9, s[40:43], s36 offen offset:{tl*256}")
    if STAMPS: a("s_waitcnt vmcnt(0)")
    stamp(a, 4); stamp(a, 5, True); stamp_flush(a, 1, 14, 6, 0)
    a("s_endpgm")

def gen_k2(name):
    a = Asm()
    a.raw(f".p2align 8\n.globl {name}\n.type {name},@function\n{name}:")
    a(f"""
    s_cmp_ge_u32 s2, 512
    s_cbranch_scc1 {name}_end
    s_load_dwordx4 s[8:11], s[0:1], 40
    s_load_dwordx2 s[14:15], s[0:1], 88
    s_and_b32 s3, s2, 7
    s_bfe_u32 s4, s2, 0x50003
    v_lshrrev_b32 v1, 6, v0
    v_and_b32 v0, 63, v0
    v_readfirstlane_b32 s6, v1
    """)
    stamp(a, 0, True); stamp(a, 1)
    a("s_cmp_ge_u32 s2, 256")
    a(f"s_cbranch_scc1 {name}_g")
    if 'noattn' in EXP: a("s_endpgm")
    pre = a
    a = Asm(); a.lg = list(pre.lg); a.hist = list(pre.hist)
    gen_attn(a, name)
    at = a
    a = Asm(); a.lg = list(pre.lg); a.hist = list(pre.hist)
    a.label(name + "_g")
    if 'nospat' in EXP: a("s_endpgm")
    gen_spat(a, name)
    a.label(name + "_end")
    a("s_endpgm")
    text = pre.text() + at.text() + a.text()
    return text, dict(name=name, vgpr=256, sgpr=102 if STAMPS else 72, grid=512, block=256, lds=81920)
```

```python
from asmlib import *
from layout import *

NS = 8
SLOT = 18432
LDS3 = NS * SLOT
NSTEP = 45

def srd(a, d, ptr, off, nbytes):
    a(f"""
    s_add_u32 s{d}, s{ptr}, {off}
    s_addc_u32 s{d+1}, s{ptr+1}, 0
    s_mov_b32 s{d+2}, {nbytes}
    s_mov_b32 s{d+3}, 0x00020000
    """)

import os
EXP = os.environ.get('K3EXP', '')
def gen_k3(name):
    a = Asm()
    a.raw(f".p2align 8\n.globl {name}\n.type {name},@function\n{name}:")
    a(f"""
    s_cmp_ge_u32 s2, 240
    s_cbranch_scc1 {name}_end
    s_and_b32 s3, s2, 7
    s_mul_i32 s3, s3, 30
    s_lshr_b32 s4, s2, 3
    s_add_u32 s3, s3, s4
    s_cmp_ge_u32 s3, 234
    s_cbranch_scc1 {name}_end
    s_load_dwordx2 s[8:9], s[0:1], 16
    s_load_dwordx2 s[10:11], s[0:1], 56
    s_load_dwordx2 s[12:13], s[0:1], 72
    s_load_dwordx2 s[14:15], s[0:1], 88
    s_mul_i32 s4, s3, 7282
    s_lshr_b32 s4, s4, 16
    s_mul_i32 s5, s4, 9
    s_sub_u32 s5, s3, s5
    v_lshrrev_b32 v1, 6, v0
    v_and_b32 v0, 63, v0
    v_readfirstlane_b32 s6, v1
    """)
    stamp(a, 0, True); stamp(a, 1)
    a("s_cmp_ge_u32 s6, 6")
    a(f"s_cbranch_scc1 {name}_ldw")
    a("s_cmp_ge_u32 s6, 4")
    a(f"s_cbranch_scc1 {name}_lda")
    pre = a
    a = Asm(); a.lg = list(pre.lg)
    srd(a, 16, 12, 0, 2048 * 1152)
    srd(a, 20, 14, WS_GATE, 8192)
    a(f"""
    v_lshrrev_b32 v4, 4, v0
    v_bfe_u32 v5, v0, 2, 2
    v_and_b32 v6, 3, v0
    v_lshl_add_u32 v7, v4, 3, v5
    v_lshlrev_b32 v7, 7, v7
    v_lshrrev_b32 v8, 1, v5
    v_and_b32 v9, 1, v4
    v_lshl_or_b32 v8, v9, 1, v8
    v_xor_b32 v8, s6, v8
    v_lshl_add_u32 v7, v8, 5, v7
    v_lshl_add_u32 v2, v6, 3, v7
    v_add_u32 v2, 10240, v2
    v_lshlrev_b32 v3, 4, v0
    """)
    a(f"""
    s_mul_i32 s24, s4, 80
    v_and_b32 v10, 15, v0
    v_add_u32 v10, s24, v10
    v_lshlrev_b32 v11, 2, v10
    """)
    G = 16
    for rt in range(5):
        a(f"buffer_load_dword v{G+rt}, v11, s[20:23], 0 offen offset:{64*rt}")
    a(f"""
    s_movk_i32 s25, 1152
    v_mul_lo_u32 v12, v10, s25
    s_lshl_b32 s26, s5, 7
    s_lshl_b32 s27, s6, 5
    s_add_u32 s26, s26, s27
    v_lshl_add_u32 v12, v4, 3, v12
    v_add_u32 v12, s26, v12
    """)
    ACC = 24; SAV = 44; FR = 64
    for i in range(20): a(f"v_mov_b32 v{ACC+i}, 0")
    a("s_mov_b32 s28, 0")
    a(f"s_mov_b32 s36, {SLOT}")
    def reads(st):
        b = FR + st * 48
        L = []
        for q in range(2):
            for t in range(2):
                L.append(f"ds_read_b64_tr_b16 v[{b+4*q+2*t}:{b+4*q+2*t+1}], v2 offset:{q*4096+t*512}")
            for rt in range(5):
                r = b + 8 + (q * 5 + rt) * 4
                L.append(f"ds_read_b128 v[{r}:{r+3}], v3 offset:{(q*5+rt)*1024}")
        return L
    def mfmas(st):
        b = FR + st * 48
        L = []
        for q in range(2):
            for rt in range(5):
                r = b + 8 + (q * 5 + rt) * 4
                L.append(f"v_mfma_f32_16x16x32_bf16 v[{ACC+4*rt}:{ACC+4*rt+3}], v[{b+4*q}:{b+4*q+3}], v[{r}:{r+3}], v[{ACC+4*rt}:{ACC+4*rt+3}]")
        return L
    def adv():
        a(f"""
        s_add_u32 s28, s28, 1
        s_cmp_eq_u32 s28, {NS}
        s_cselect_b32 s29, {-(NS-1)*SLOT}, s36
        s_cselect_b32 s28, 0, s28
        v_add_u32 v2, s29, v2
        v_add_u32 v3, s29, v3
        """)
    def step(i):
        a("s_barrier")
        rd = reads(i % 2)
        mf = mfmas((i - 1) % 2) if i > 0 else []
        if 'nocomp' in EXP: rd, mf = [], []
        for x in (interleave(rd, mf) if mf else rd): a(x)
        if i == 9:
            for r in range(20):
                a(f"v_mul_f32 v{SAV+r}, v{G+r//4}, v{ACC+r}")
            for r in range(20): a(f"v_mov_b32 v{ACC+r}, 0")
        adv()
        if 'lag' not in EXP: a.wait_lds_all()
    step(0)
    stamp(a, 2)
    def body(it):
        step(1 + 2 * it); step(2 + 2 * it)
    a.roll(body, 22, "s30", name + "_cl")
    stamp(a, 3)
    for x in mfmas((NSTEP - 1) % 2): a(x)
    for rt in range(5):
        a(f"v_sub_f32 v{G+rt}, 1.0, v{G+rt}")
    for rt in range(5):
        for r in range(4):
            a(f"v_fma_f32 v{SAV+4*rt+r}, v{G+rt}, v{ACC+4*rt+r}, v{SAV+4*rt+r}")
        a(f"v_cvt_pk_bf16_f32 v{FR+2*rt}, v{SAV+4*rt}, v{SAV+4*rt+1}")
        a(f"v_cvt_pk_bf16_f32 v{FR+2*rt+1}, v{SAV+4*rt+2}, v{SAV+4*rt+3}")
        a(f"s_mov_b32 s31, {rt*16*1152}")
        a(f"buffer_store_dwordx2 v[{FR+2*rt}:{FR+2*rt+1}], v12, s[16:19], s31 offen")
    if STAMPS: a("s_waitcnt vmcnt(0)")
    stamp(a, 4); stamp(a, 5, True); stamp_flush(a, 2, 14, 6, 0)
    a("s_endpgm")
    comp = a
    a = Asm(); a.lg = list(pre.lg)
    a.label(name + "_lda")
    srd(a, 16, 14, WS_AF, AF_BYTES)
    a(f"""
    s_sub_u32 s24, s6, 4
    s_mul_i32 s25, s4, 5
    v_lshrrev_b32 v4, 4, v0
    v_and_b32 v5, 15, v0
    s_lshl_b32 s26, s24, 2
    v_add_u32 v4, s26, v4
    v_lshlrev_b32 v4, 9, v4
    v_lshl_add_u32 v4, v5, 4, v4
    s_mul_i32 s27, s24, 5120
    """)
    for rt in range(5):
        a(f"""
        s_add_u32 s32, s25, {rt}
        s_lshr_b32 s33, s32, 1
        s_mul_i32 s33, s33, {360*512}
        s_and_b32 s32, s32, 1
        s_lshl_b32 s32, s32, 8
        s_add_u32 s33, s33, s32
        v_add_u32 v{8+rt}, s33, v4
        """)
    a("s_mov_b32 s28, 0\ns_mov_b32 s29, 0")
    toks = {}
    def issue(i):
        for rt in range(5):
            a(f"s_add_u32 s34, s29, s27")
            a(f"s_add_u32 m0, s34, {rt*1024}")
            toks[i] = a(f"buffer_load_dwordx4 v{8+rt}, s[16:19], s28 offen lds")
        a(f"""
        s_add_u32 s28, s28, 4096
        s_add_u32 s29, s29, {SLOT}
        s_cmp_eq_u32 s29, {NS*SLOT}
        s_cselect_b32 s29, 0, s29
        """)
    AH = NS - 2 if 'lag' in EXP else NS - 1
    for i in range(AH): issue(i)
    def body(i):
        a.wait_vm(toks[i])
        a("s_barrier")
        if i + AH < NSTEP: issue(i + AH)
    a.roll(body, NSTEP, "s30", name + "_al")
    a("s_endpgm")
    lda = a
    a = Asm(); a.lg = list(pre.lg)
    a.label(name + "_ldw")
    srd(a, 16, 8, 0, 576 * 1152)
    srd(a, 20, 10, 0, 2304 * 1152)
    a(f"""
    s_sub_u32 s24, s6, 6
    s_lshl_b32 s25, s24, 5
    s_mul_i32 s27, s24, 4096
    s_add_u32 s27, s27, 10240
    s_lshl_b32 s26, s5, 7
    s_movk_i32 s35, 1152
    v_lshrrev_b32 v4, 3, v0
    v_and_b32 v5, 7, v0
    v_and_b32 v6, 2, v4
    v_xor_b32 v5, v5, v6
    """)
    for j in range(4):
        a(f"""
        v_add_u32 v6, s25, v4
        v_add_u32 v6, {8*j}, v6
        v_xor_b32 v7, {(j&1)<<2}, v5
        v_lshlrev_b32 v7, 4, v7
        v_add_u32 v7, s26, v7
        v_mul_lo_u32 v20, v6, s35
        v_add_u32 v{16+j}, v20, v7
        v_lshrrev_b32 v20, 4, v6
        v_lshlrev_b32 v20, 1, v20
        v_add_u32 v20, v20, v6
        v_mul_lo_u32 v20, v20, s35
        v_add_u32 v{8+j}, v20, v7
        v_lshrrev_b32 v20, 1, v6
        v_lshlrev_b32 v20, 4, v20
        v_add_u32 v20, v20, v6
        v_add_u32 v20, 16, v20
        v_mul_lo_u32 v20, v20, s35
        v_add_u32 v{12+j}, v20, v7
        """)
    a("s_mov_b32 s28, 0\ns_mov_b32 s29, 0")
    toks = {}
    def issue(i):
        for j in range(4):
            a(f"s_add_u32 s34, s29, s27")
            a(f"s_add_u32 m0, s34, {j*1024}")
            if i < 8:
                toks[i] = a(f"buffer_load_dwordx4 v{8+j}, s[16:19], s28 offen lds")
            elif i == 8:
                toks[i] = a(f"buffer_load_dwordx4 v{12+j}, s[16:19], 0 offen lds")
            else:
                toks[i] = a(f"buffer_load_dwordx4 v{16+j}, s[20:23], s28 offen lds")
        if i < 7: a(f"s_add_u32 s28, s28, {72*1152}")
        elif i == 7: pass
        elif i == 8: a("s_mov_b32 s28, 0")
        else: a(f"s_add_u32 s28, s28, {64*1152}")
        a(f"""
        s_add_u32 s29, s29, {SLOT}
        s_cmp_eq_u32 s29, {NS*SLOT}
        s_cselect_b32 s29, 0, s29
        """)
    AH = NS - 2 if 'lag' in EXP else NS - 1
    for i in range(AH): issue(i)
    def body(i):
        a.wait_vm(toks[i])
        a("s_barrier")
        if i + AH < NSTEP: issue(i + AH)
    a.roll(body, NSTEP, "s30", name + "_wl")
    a.label(name + "_end")
    a("s_endpgm")
    ldw = a
    text = pre.text() + comp.text() + lda.text() + ldw.text()
    desc = dict(name=name, vgpr=160, sgpr=102 if STAMPS else 40, grid=240, block=512, lds=LDS3)
    return text, desc
```

```python
WS_QA   = 0x0000000
WS_QB   = 0x0200000
WS_GATE = 0x0240000
WS_STAT = 0x0250000
WS_KV   = 0x0300000
KV_TILE = 2560
KV_V    = 1024
KV_VR   = 320
KV_KB   = 1024 + 4 * KV_VR
WS_Z1   = 0x0800000
WS_Z2   = 0x1100000
WS_AF   = 0x1A00000
AF_BYTES = 64 * 360 * 512
Z_BYTES = 0x900000
KV_BYTES = 32 * 64 * KV_TILE
WS_END = WS_AF + AF_BYTES

def pi(i):
    return (i & ~12) | ((i & 4) << 1) | ((i & 8) >> 1)

WS_STAMP = 0x3000000
WS_FLAG = 0x02C0000
WS_FLG1 = 0x02D0000
```

```python
import sys
from layout import *
HDR = open("gated_mix__mha_block__mixer_gmlp__prompt.s.ref").read().split("; Override launch geometry")[0]

def assemble(kernels, path):
    s = HDR
    for _, d in kernels:
        s += f"; @launch kernel={d['name']} grid=({d['grid']},1,1) block=({d['block']},1,1) lds={d['lds']}\n"
    s += '.amdgcn_target "amdgcn-amd-amdhsa--gfx950"\n.text\n'
    for t, _ in kernels:
        s += t
    s += '.section .rodata,"a"\n'
    for _, d in kernels:
        acc = d.get("acc", (d["vgpr"] + 3) // 4 * 4)
        s += f""".p2align 6
.amdhsa_kernel {d['name']}
  .amdhsa_next_free_vgpr {d['vgpr']}
  .amdhsa_next_free_sgpr {d['sgpr']}
  .amdhsa_accum_offset {min(acc, 256)}
  .amdhsa_group_segment_fixed_size 0
  .amdhsa_kernarg_size 96
  .amdhsa_user_sgpr_count 2
  .amdhsa_user_sgpr_kernarg_segment_ptr 1
  .amdhsa_system_sgpr_workgroup_id_x 1
.end_amdhsa_kernel
"""
    open(path, "w").write(s)

if __name__ == "__main__":
    which = sys.argv[1]
    path = sys.argv[2]
    ks = []
    if "f" in which:
        from kf import gen_kf
        ks.append(gen_kf("sf_kernel"))
    if "1" in which:
        from k1 import gen_k1
        ks.append(gen_k1("s1_kernel"))
    if "2" in which:
        from k2 import gen_k2
        ks.append(gen_k2("s2_kernel"))
    if "3" in which:
        from k3 import gen_k3
        ks.append(gen_k3("s3_kernel"))
    assemble(ks, path)
```

```python
from asmlib import *
from layout import *
from k2 import srd, vpi, M32, M16, R
import os, math, struct
EXP = os.environ.get('K1EXP', '')
SC = '' if 'plain' in EXP else ' sc0 sc1'

def f32h(x): return "0x%08x" % struct.unpack("<I", struct.pack("<f", x))[0]
LOG2E = math.log2(math.e)
GC1 = -2.0 * math.sqrt(2.0 / math.pi) * LOG2E
GC2 = GC1 * 0.044715
CQ = LOG2E / math.sqrt(18.0)

def x_dma_setup(a, vDX):
    srd(a, 16, 8, 0, 2048 * 1152)
    a(f"""
    s_lshl_b32 s26, s5, 7
    s_lshl_b32 s27, s6, 5
    s_add_u32 s26, s26, s27
    v_lshrrev_b32 v4, 3, v0
    v_and_b32 v5, 7, v0
    s_lshl_b32 s55, s6, 12
    s_mov_b32 s56, 0
    s_movk_i32 s28, 1152
    """)
    for j in range(4):
        a(f"""
        v_add_u32 v6, {8*j}, v4
        v_bfe_u32 v7, v6, 1, 3
        v_xor_b32 v7, v7, v5
        v_add_u32 v6, s26, v6
        v_mul_lo_u32 v6, v6, s28
        v_lshl_add_u32 v6, v7, 4, v6
        v_subrev_u32 v{vDX+j}, {1024*j}, v6
        """)
def x_dma(vDX, lds):
    return [f"s_add_u32 m0, s55, {lds}"] + \
           [f"buffer_load_dwordx4 v{vDX+j}, s[16:19], s56 offen offset:{1024*j} lds" for j in range(4)] + ["s_add_u32 s56, s56, 128"]
def x_read_setup(a, vX, rowbase_sgpr):
    a("v_and_b32 v8, 31, v0")
    vpi(a, 9, 8, 10)
    a(f"""
    v_lshrrev_b32 v10, 5, v0
    v_bfe_u32 v11, v9, 1, 3
    v_xor_b32 v11, v11, v10
    v_lshlrev_b32 v11, 4, v11
    v_lshl_add_u32 v11, v9, 7, v11
    v_add_u32 v{vX}, s{rowbase_sgpr}, v11
    v_xor_b32 v{vX+1}, 32, v{vX}
    v_xor_b32 v{vX+2}, 64, v{vX}
    v_xor_b32 v{vX+3}, 96, v{vX}
    """)

def emit_mix(a, mf, fill, tok=None):
    seq = []
    n, m = len(mf), len(fill); k = 0
    for i, x in enumerate(mf):
        seq.append(x)
        tgt = min(m, (i + 1) * m // max(1, n - 1)) if n > 1 else m
        while k < tgt or (0 < k < m and (fill[k-1].startswith("s_mov_b64 exec, s") or fill[k].startswith("s_mov_b64 exec, -1"))):
            seq.append(fill[k]); k += 1
    seq += fill[k:]
    last = None
    for x in seq:
        t = a(x)
        if x.endswith(" lds"): last = t
    return last

def gelu(a, regs, T, cv):
    for g in range(0, len(regs), 8):
        grp = regs[g:g + 8]
        for k, r in enumerate(grp): a(f"v_mul_f32 v{T+k}, v{r}, v{r}")
        for k, r in enumerate(grp): a(f"v_fmaak_f32 v{T+k}, v{T+k}, v{cv}, {f32h(GC1)}")
        for k, r in enumerate(grp): a(f"v_mul_f32 v{T+k}, v{T+k}, v{r}")
        for k, r in enumerate(grp): a(f"v_exp_f32 v{T+k}, v{T+k}")
        for k, r in enumerate(grp): a(f"v_add_f32 v{T+k}, 1.0, v{T+k}")
        for k, r in enumerate(grp): a(f"v_rcp_f32 v{T+k}, v{T+k}")
        for k, r in enumerate(grp): a(f"v_mul_f32 v{r}, v{r}, v{T+k}")

WB_, WSL_ = 32768, 12288
def gen_z(a, name, is2):
    ACC = 16
    XF = 112
    WF = 176
    vX, vW, vDX, vDW = 216, 220, 224, 228
    T = 232; CV = 240
    x_dma_setup(a, vDX)
    srd(a, 20, 12, 0, 576 * 9216)
    a(f"""
    s_mul_i32 s26, s7, 384
    s_add_u32 s26, s26, {4608 if is2 else 0}
    s_lshl_b32 s27, s6, 3
    s_movk_i32 s28, 9216
    v_lshlrev_b32 v6, 1, v4
    v_and_b32 v6, 4, v6
    v_xor_b32 v6, v6, v5
    v_lshlrev_b32 v6, 4, v6
    v_add_u32 v6, s26, v6
    v_add_u32 v7, s27, v4
    v_mul_lo_u32 v7, v7, s28
    v_add_u32 v{vDW}, v7, v6
    s_lshl_b32 s54, s6, 10
    s_add_u32 s54, s54, {WB_}
    s_mov_b32 s57, 0
    """)
    def wl(H):
        L = []
        for un in range(3):
            L.append(f"s_add_u32 m0, s54, {(H%4)*WSL_ + un*4096 - un*128}")
            L.append(f"buffer_load_dwordx4 v{vDW}, s[20:23], s57 offen offset:{un*128} lds")
        L.append(f"s_add_u32 s57, s57, {32*9216}")
        return L
    tx, tw = {}, {}
    tx[0] = emit_mix(a, x_dma(vDX, 0), [])
    tw[0] = emit_mix(a, wl(0), []); tw[1] = emit_mix(a, wl(1), [])
    tx[1] = emit_mix(a, x_dma(vDX, 16384), [])
    tw[2] = emit_mix(a, wl(2), []); tw[3] = emit_mix(a, wl(3), [])
    a("s_and_b32 s29, s6, 1\ns_lshl_b32 s29, s29, 13")
    x_read_setup(a, vX, 29)
    a(f"""
    v_bfe_u32 v12, v0, 2, 2
    v_lshl_add_u32 v13, v10, 3, v12
    v_lshlrev_b32 v13, 7, v13
    v_and_b32 v14, 2, v12
    v_lshl_add_u32 v13, v14, 5, v13
    v_and_b32 v14, 16, v0
    v_lshl_add_u32 v13, v14, 1, v13
    v_and_b32 v14, 1, v0
    v_lshl_add_u32 v13, v14, 4, v13
    v_and_b32 v14, 2, v0
    v_lshl_add_u32 v13, v14, 2, v13
    s_lshr_b32 s30, s6, 1
    s_mul_i32 s31, s30, 3
    """)
    for ct in range(3):
        a(f"""
        s_add_u32 s32, s31, {ct}
        s_and_b32 s33, s32, 1
        s_lshl_b32 s33, s33, 6
        s_lshr_b32 s32, s32, 1
        s_lshl_b32 s32, s32, 12
        s_add_u32 s32, s32, {WB_}
        v_xor_b32 v14, s33, v13
        v_add_u32 v{vW+ct}, s32, v14
        """)
    a(f"v_mov_b32 v{CV}, {f32h(GC2)}")
    def xreads(S, us):
        return [f"ds_read_b128 {R(XF+(S%2)*32+(u*2+rg)*4,4)}, v{vX+u} offset:{(S%2)*16384+rg*4096}" for u in us for rg in range(2)]
    def reads(U):
        S, u = U // 4, U % 4; H, up = U // 2, U % 2
        L = []
        if u == 0: L += xreads(S, [0])
        for ct in range(3):
            for t in range(2):
                L.append(f"ds_read_b64_tr_b16 {R(WF+(U%2)*12+4*ct+2*t,2)}, v{vW+ct} offset:{(H%4)*WSL_+up*2048+t*512}")
        if u == 0: L += xreads(S, [1])
        if u == 1: L += xreads(S, [2, 3])
        return L
    def mfmas(U):
        S, u = U // 4, U % 4
        L = []
        for ct in range(3):
            for rg in range(2):
                c = ACC + (rg * 3 + ct) * 16
                xf, wf = R(XF + (S % 2) * 32 + (u * 2 + rg) * 4, 4), R(WF + (U % 2) * 12 + 4 * ct, 4)
                A, B = (xf, wf) if is2 else (wf, xf)
                L.append(f"{M32} {R(c,16)}, {A}, {B}, {R(c,16) if U else 0}")
        return L
    a.wait_vm(tw[0]); a("s_barrier")
    stamp(a, 2)
    for x in reads(0): a(x)
    def step(U):
        S, u = U // 4, U % 4; H, up = U // 2, U % 2
        ld = []; key = None
        if up == 1 and H + 1 < 18:
            a.wait_vm(tw[H + 1])
            if u == 3: a.wait_vm(tx[S + 1])
            a.wait_lds_all(); a("s_barrier")
            if H + 4 < 18: ld = wl(H + 4); key = (tw, H + 4)
        if u == 2 and S + 2 < 9:
            ld = x_dma(vDX, (S % 2) * 16384); key = (tx, S + 2)
        fill = reads(U + 1) if U + 1 < 36 else []
        t = emit_mix(a, mfmas(U), fill[:4] + ld + fill[4:])
        if key: key[0][key[1]] = t
    for U in range(1): step(U)
    def body(it):
        for U in range(1 + 8 * it, 9 + 8 * it): step(U)
    a.roll(body, 4, "s65", name + "_l")
    for U in range(33, 36): step(U)
    stamp(a, 3)
    a(f"""
    s_and_b32 s29, s6, 1
    s_lshl_b32 s32, s5, 2
    s_lshl_b32 s33, s29, 1
    s_add_u32 s32, s32, s33
    s_mul_i32 s33, s7, 6
    s_add_u32 s33, s33, s31
    """)
    if not is2:
        srd(a, 40, 14, WS_Z1, Z_BYTES)
        a(f"""
        v_lshlrev_b32 v1, 9, v10
        v_lshl_add_u32 v1, v9, 4, v1
        s_mul_i32 s34, s32, 72
        s_add_u32 s34, s34, s33
        s_lshl_b32 s34, s34, 11
        """)
        k = 0
        for rg in range(2):
            for ct in range(3):
                c = ACC + (rg * 3 + ct) * 16
                gelu(a, list(range(c, c + 16)), T, CV)
                p = XF + (k % 4) * 8; k += 1
                for i in range(8): a(f"v_cvt_pk_bf16_f32 v{p+i}, v{c+2*i}, v{c+2*i+1}")
                a(f"s_add_u32 s35, s34, {rg*72*2048 + ct*2048}")
                for j in range(2): a(f"buffer_store_dwordx4 {R(p+4*j,4)}, v1, s[40:43], s35 offen offset:{1024*j}{SC}")
    else:
        srd(a, 40, 14, WS_Z2, Z_BYTES)
        srd(a, 44, 14, WS_STAT, 16 * 24 * 1024)
        srd(a, 48, 68, 0, 256)
        S1, S2 = 180, 196
        NON = 212
        a(f"v_mov_b32 v3, 0\nbuffer_load_dwordx2 {R(NON,2)}, v3, s[48:51], 0 offen sc0 sc1")
        a(f"""
        v_bfe_u32 v1, v0, 4, 1
        v_lshlrev_b32 v1, 9, v1
        v_lshl_add_u32 v1, v10, 5, v1
        v_bfe_u32 v2, v0, 3, 1
        v_lshl_add_u32 v1, v2, 6, v1
        v_bfe_u32 v2, v0, 2, 1
        v_lshl_add_u32 v1, v2, 4, v1
        v_and_b32 v2, 3, v0
        v_lshl_add_u32 v1, v2, 28, v1
        s_mul_i32 s34, s5, 24
        s_lshl_b32 s35, s7, 1
        s_add_u32 s35, s35, s30
        s_add_u32 s35, s35, s34
        s_lshl_b32 s35, s35, 10
        s_lshl_b32 s36, s29, 8
        s_add_u32 s35, s35, s36
        """)
        for rg in range(2):
            for ct in range(3):
                c = ACC + (rg * 3 + ct) * 16
                gelu(a, list(range(c, c + 16)), T, CV)
                for i in range(16):
                    if ct == 0:
                        a(f"v_mul_f32 v{S2+i}, v{c+i}, v{c+i}")
                    else:
                        a(f"v_fmac_f32 v{S2+i}, v{c+i}, v{c+i}")
                        a(f"v_add_f32 v{S1+i}, v{c+i}, v{S1+i if ct == 2 else c-16+i}")
            for q in range(16): a(f"v_permlane16_swap_b32 v{S1+q}, v{S2+q}")
            for q in range(16): a(f"v_add_f32 v{S1+q}, v{S1+q}, v{S2+q}")
            for q in range(8):
                a(f"v_add_f32_dpp v{S2+q}, v{S1+q}, v{S1+q} row_ror:8 row_mask:0xf bank_mask:0x3")
                a(f"v_add_f32_dpp v{S2+q}, v{S1+q+8}, v{S1+q+8} row_ror:8 row_mask:0xf bank_mask:0xc")
            o = XF + 4 * rg
            for q in range(4):
                a(f"v_add_f32_dpp v{o+q}, v{S2+q}, v{S2+q} row_half_mirror row_mask:0xf bank_mask:0x5")
                a(f"v_add_f32_dpp v{o+q}, v{S2+q+4}, v{S2+q+4} row_half_mirror row_mask:0xf bank_mask:0xa")
            for q in range(4): a(f"v_add_f32_dpp v{o+q}, v{o+q}, v{o+q} quad_perm:[1,0,3,2] row_mask:0xf bank_mask:0xf")
            for q in range(4): a(f"v_add_f32_dpp v{o+q}, v{o+q}, v{o+q} quad_perm:[2,3,0,1] row_mask:0xf bank_mask:0xf")
            a(f"buffer_store_dwordx4 {R(o,4)}, v1, s[44:47], s35 offen offset:{rg*128} sc0 sc1")
        a("s_waitcnt vmcnt(0)")
        a("s_barrier")
        stamp(a, 6)
        srd(a, 60, 14, WS_FLG1, 32768)
        a(f"""
        s_cmp_lg_u32 s6, 0
        s_cbranch_scc1 {name}_pw
        s_mov_b32 s38, 0x40000
        v_mov_b32 v3, 0
        """)
        a.label(name + "_pn")
        a(f"""
        v_cmp_ne_u32 vcc, 0, v{NON}
        s_cbranch_vccnz {name}_pn_ok
        buffer_load_dwordx2 {R(NON,2)}, v3, s[48:51], 0 offen sc0 sc1
        s_waitcnt vmcnt(0)
        s_sub_u32 s38, s38, 1
        s_cmp_lg_u32 s38, 0
        s_cbranch_scc1 {name}_pn
        """)
        a.label(name + "_pn_ok")
        a(f"""
        s_lshl_b32 s36, s5, 11
        s_lshl_b32 s37, s7, 7
        s_add_u32 s37, s37, s36
        v_lshlrev_b32 v3, 16, v0
        buffer_store_dwordx2 {R(NON,2)}, v3, s[60:63], s37 offen sc0 sc1
        v_min_u32 v3, 11, v0
        v_lshlrev_b32 v3, 7, v3
        """)
        a.label(name + "_poll")
        a(f"""
        buffer_load_dwordx2 v[4:5], v3, s[60:63], s36 offen sc0 sc1
        s_waitcnt vmcnt(0)
        v_cmp_ne_u64 vcc, v[4:5], {R(NON,2)}
        s_sub_u32 s38, s38, 1
        s_cbranch_vccz {name}_pw
        s_cmp_eq_u32 s38, 0
        s_cbranch_scc1 {name}_pw
        s_sleep 3
        s_branch {name}_poll
        """)
        a.label(name + "_pw")
        a("s_barrier")
        stamp(a, 7)
        LB = 112
        a(f"""
        v_lshrrev_b32 v2, 4, v0
        v_and_b32 v3, 15, v0
        v_lshlrev_b32 v2, 10, v2
        v_lshl_add_u32 v2, v3, 4, v2
        s_lshl_b32 s36, s34, 10
        s_lshl_b32 s37, s29, 8
        s_add_u32 s36, s36, s37
        """)
        for n in range(6):
            for st in range(2):
                a(f"buffer_load_dwordx4 {R(LB+(n*2+st)*4,4)}, v2, s[44:47], s36 offen offset:{st*512} sc0 sc1")
            a("s_add_u32 s36, s36, 4096")
        for n in range(1, 6):
            for i in range(8): a(f"v_add_f32 v{LB+i}, v{LB+i}, v{LB+n*8+i}")
        for sw in ("v_permlane32_swap_b32", "v_permlane16_swap_b32"):
            for i in range(8): a(f"v_mov_b32 v{LB+8+i}, v{LB+i}")
            for i in range(8): a(f"{sw} v{LB+i}, v{LB+8+i}")
            for i in range(8): a(f"v_add_f32 v{LB+i}, v{LB+i}, v{LB+8+i}")
        inv = f32h(1.0 / 2304.0)
        for i in range(4):
            a(f"v_mul_f32 v{LB+i}, {inv}, v{LB+i}")
            a(f"v_mul_f32 v{LB+4+i}, {inv}, v{LB+4+i}")
            a(f"v_fma_f32 v{LB+4+i}, -v{LB+i}, v{LB+i}, v{LB+4+i}")
            a(f"v_max_f32 v{LB+4+i}, 0, v{LB+4+i}")
            a(f"v_add_f32 v{LB+4+i}, {f32h(1e-5)}, v{LB+4+i}")
            a(f"v_rsq_f32 v{LB+4+i}, v{LB+4+i}")
        for i in range(4): a(f"v_mul_f32 v{LB+i}, -v{LB+i}, v{LB+4+i}".replace("v_mul_f32", "v_mul_f32_e64"))
        a(f"""
        s_lshl_b32 s37, s6, 9
        v_lshlrev_b32 v3, 4, v3
        v_add_u32 v3, s37, v3
        ds_write_b128 v3, {R(LB,4)}
        ds_write_b128 v3, {R(LB+4,4)} offset:256
        v_lshlrev_b32 v4, 5, v10
        v_add_u32 v4, s37, v4
        v_lshlrev_b32 v1, 4, v0
        s_lshl_b32 s34, s33, 7
        s_lshl_b32 s35, s32, 1
        s_add_u32 s34, s34, s35
        s_lshl_b32 s34, s34, 10
        s_waitcnt lgkmcnt(0)
        """)
        k = 0
        for rg in range(2):
            for j in range(2):
                for h in range(2):
                    a(f"ds_read_b128 {R(S1+8*j+4*h,4)}, v4 offset:{rg*128+j*64+h*16}")
                    a(f"ds_read_b128 {R(S2+8*j+4*h,4)}, v4 offset:{256+rg*128+j*64+h*16}")
            for ct in range(3):
                c = ACC + (rg * 3 + ct) * 16
                p = 120 + (k % 4) * 8; k += 1
                for i in range(16):
                    a(f"v_fma_f32 v{c+i}, v{c+i}, v{S2+i}, v{S1+i}")
                for i in range(8): a(f"v_cvt_pk_bf16_f32 v{p+i}, v{c+2*i}, v{c+2*i+1}")
                a(f"s_add_u32 s35, s34, {ct*128*1024 + rg*2048}")
                for j in range(2): a(f"buffer_store_dwordx4 {R(p+4*j,4)}, v1, s[40:43], s35 offen offset:{1024*j}{SC}")
    if STAMPS: a("s_waitcnt vmcnt(0)")
    stamp(a, 4); stamp(a, 5, True); stamp_flush(a, 0, 14, 6, 0)
    a("s_endpgm")

def w36_setup(a, vDW, isv):
    srd(a, 20, 10, 0, 576 * 3456)
    a(f"""
    s_mul_i32 s26, s7, 288
    s_add_u32 s26, s26, {2304 if isv else 0}
    s_movk_i32 s28, 3456
    s_mul_i32 s54, s6, 4608
    s_mov_b32 s57, 4096
    s_mov_b64 s[52:53], 0xffffffff
    """)
    for j in range(5):
        a(f"""
        v_add_u32 v6, {64*j}, v0
        v_mul_u32_u24 v7, 1821, v6
        v_lshrrev_b32 v7, 16, v7
        v_mul_u32_u24 v11, 36, v7
        v_sub_u32 v6, v6, v11
        v_cmp_lt_u32 vcc, 17, v6
        v_cndmask_b32 v11, 0, 1, vcc
        v_mul_u32_u24 v12, 18, v11
        v_sub_u32 v6, v6, v12
        s_lshl_b32 s27, s6, 3
        v_add_u32 v7, s27, v7
        """.replace("v_cndmask_b32 v11, 0, 1, vcc", "v_cndmask_b32_e64 v11, 0, 1, vcc"))
        if isv:
            a("""
            v_lshrrev_b32 v12, 2, v7
            v_lshl_add_u32 v7, v12, 2, v7
            v_lshl_add_u32 v7, v11, 2, v7
            v_mul_lo_u32 v7, v7, s28
            """)
        else:
            a("""
            v_mul_lo_u32 v7, v7, s28
            v_mul_u32_u24 v12, 1152, v11
            v_add_u32 v7, v7, v12
            """)
        a(f"""
        v_lshl_add_u32 v7, v6, 4, v7
        v_add_u32 v7, s26, v7
        v_subrev_u32 v{vDW+j}, {1024*j if j < 4 else 0}, v7
        """)
    a("s_mov_b32 s57, 0")
def w36_dma(vDW, lds, rows):
    return [f"s_add_u32 m0, s54, {lds}"] + \
           [f"buffer_load_dwordx4 v{vDW+j}, s[20:23], s57 offen offset:{1024*j} lds" for j in range(4)] + \
           [f"s_add_u32 m0, s54, {lds+4096}", "s_mov_b64 exec, s[52:53]",
            f"buffer_load_dwordx4 v{vDW+4}, s[20:23], s57 offen lds", "s_mov_b64 exec, -1", f"s_add_u32 s57, s57, {rows*3456}"]

def gen_qk(a, name):
    ACC = 16
    XF = 160
    WF = 168
    vX, vW, vWb, vDX, vDW = 240, 244, 245, 246, 250
    WB = 32768; WS_ = 18432
    x_dma_setup(a, vDX)
    w36_setup(a, vDW, False)
    tx, tw = {}, {}
    tx[0] = emit_mix(a, x_dma(vDX, 0), [])
    tw[0] = emit_mix(a, w36_dma(vDW, WB, 32), [])
    tw[1] = emit_mix(a, w36_dma(vDW, WB + WS_, 32), [])
    tx[1] = emit_mix(a, x_dma(vDX, 16384), [])
    x_read_setup(a, vX, 55)
    a(f"""
    v_bfe_u32 v12, v0, 2, 2
    v_lshl_add_u32 v13, v10, 3, v12
    v_mul_u32_u24 v13, 576, v13
    v_bfe_u32 v14, v0, 4, 1
    v_mul_u32_u24 v14, 288, v14
    v_add_u32 v13, v13, v14
    v_add_u32 v13, {WB}, v13
    v_and_b32 v14, 3, v0
    v_mul_u32_u24 v15, 72, v14
    v_add_u32 v{vWb}, v13, v15
    v_add_u32 v{vWb}, 32, v{vWb}
    v_and_b32 v14, 1, v0
    v_lshl_add_u32 v13, v14, 4, v13
    v_and_b32 v14, 2, v0
    v_lshl_add_u32 v{vW}, v14, 2, v13
    """)
    def reads(U):
        S, u = U // 4, U % 4; H, up = U // 2, U % 2
        L = [f"ds_read_b128 {R(XF+(U%2)*4,4)}, v{vX+u} offset:{(S%2)*16384}"]
        base = (H % 2) * WS_ + up * 9216
        for h in range(9):
            for t in range(2):
                if h < 8: L.append(f"ds_read_b64_tr_b16 {R(WF+(U%2)*36+4*h+2*t,2)}, v{vW} offset:{base+t*2304+36*h+(4 if h%2 else 0)}")
                else: L.append(f"ds_read_b64_tr_b16 {R(WF+(U%2)*36+4*h+2*t,2)}, v{vWb} offset:{base+t*2304}")
        return L
    def mfmas(U):
        return [f"{M32} {R(ACC+16*h,16)}, {R(WF+(U%2)*36+4*h,4)}, {R(XF+(U%2)*4,4)}, {R(ACC+16*h,16) if U else 0}" for h in range(9)]
    a.wait_vm(tw[0]); a("s_barrier")
    stamp(a, 2)
    for x in reads(0): a(x)
    def step(U):
        S, u = U // 4, U % 4; H, up = U // 2, U % 2
        ld = []
        if up == 1 and H + 1 < 18:
            a.wait_vm(tw[H + 1])
            if u == 3: a.wait_vm(tx[S + 1])
            a.wait_lds_all(); a("s_barrier")
        fill = reads(U + 1) if U + 1 < 36 else []
        if up == 1 and H + 2 < 18:
            t = emit_mix(a, mfmas(U), w36_dma(vDW, WB + (H % 2) * WS_, 32) + fill); tw[H + 2] = t
        elif u == 0 and S >= 1 and S + 1 < 9:
            t = emit_mix(a, mfmas(U), fill + x_dma(vDX, ((S + 1) % 2) * 16384)); tx[S + 1] = t
        else:
            emit_mix(a, mfmas(U), fill)
    for U in range(3): step(U)
    def body(it):
        for U in range(3 + 8 * it, 11 + 8 * it): step(U)
    a.roll(body, 4, "s65", name + "_l")
    step(35)
    stamp(a, 3)
    srd(a, 40, 14, WS_QA, WS_GATE - WS_QA)
    srd(a, 44, 14, WS_KV, KV_BYTES)
    a(f"""
    s_lshl_b32 s32, s5, 2
    s_add_u32 s32, s32, s6
    s_lshl_b32 s33, s7, 9
    s_add_u32 s33, s33, s32
    s_lshl_b32 s34, s33, 10
    s_mul_i32 s35, s33, {KV_TILE}
    s_lshl_b32 s36, s33, 7
    s_add_u32 s36, s36, {WS_QB - WS_QA}
    s_add_u32 s37, s35, {KV_KB}
    v_lshlrev_b32 v1, 9, v10
    v_lshl_add_u32 v1, v9, 4, v1
    v_lshlrev_b32 v2, 4, v0
    v_lshlrev_b32 v3, 14, v10
    v_lshl_add_u32 v3, v9, 2, v3
    s_mov_b32 s38, {2*64*KV_TILE}
    v_mul_lo_u32 v4, v10, s38
    v_lshl_add_u32 v4, v8, 2, v4
    v_mov_b32 v6, {f32h(CQ)}
    v_mov_b32 v7, {f32h(CQ)}
    """)
    for h in range(9):
        c = ACC + 16 * h
        p = WF + (h % 4) * 8
        for i in range(8): a(f"v_mul_f32 v{c+i}, v6, v{c+i}")
        for i in range(8): a(f"v_cvt_pk_bf16_f32 v{p+i}, v{c+2*i}, v{c+2*i+1}")
        if h < 8:
            a(f"buffer_store_dwordx4 {R(p,4)}, v1, s[40:43], s34 offen{SC}")
            a(f"buffer_store_dwordx4 {R(p+4,4)}, v2, s[44:47], s35 offen{SC}")
            a(f"s_add_u32 s34, s34, {64*1024}\ns_add_u32 s35, s35, {64*KV_TILE}")
        else:
            for aa in range(2):
                for eo in range(2):
                    hh = 4 * aa + eo
                    a(f"s_add_u32 s38, s36, {hh*8192}\ns_add_u32 s39, s37, {hh*64*KV_TILE}")
                    a(f"buffer_store_dword v{p+2*aa+eo}, v3, s[40:43], s38 offen{SC}")
                    a(f"buffer_store_dword v{p+4+2*aa+eo}, v4, s[44:47], s39 offen{SC}")
    if STAMPS: a("s_waitcnt vmcnt(0)")
    stamp(a, 4); stamp(a, 5, True); stamp_flush(a, 0, 14, 6, 0)
    a("s_endpgm")

def gen_v(a, name):
    ACC = 16
    XF = 96
    WF = 104
    vX, vW, vG, vDX, vDW = 144, 148, 149, 150, 154
    SL = 16384 + 18432; GB = 2 * SL
    x_dma_setup(a, vDX)
    w36_setup(a, vDW, True)
    srd(a, 48, 66, 0, 1152)
    def loads(S):
        return x_dma(vDX, (S % 2) * SL) + w36_dma(vDW, (S % 2) * SL + 16384, 64)
    tok = {}
    a(f"""
    v_lshlrev_b32 v2, 4, v0
    s_mov_b32 m0, {GB}
    buffer_load_dwordx4 v2, s[48:51], 0 offen lds
    buffer_load_dwordx4 v2, s[48:51], 0 offen offset:1024 lds
    """)
    for S in range(2): tok[S] = emit_mix(a, loads(S), [])
    x_read_setup(a, vX, 55)
    a(f"""
    v_bfe_u32 v12, v0, 2, 2
    v_lshl_add_u32 v13, v10, 2, v12
    v_mul_u32_u24 v13, 576, v13
    v_and_b32 v14, 16, v0
    v_lshl_add_u32 v13, v14, 1, v13
    v_and_b32 v14, 3, v0
    v_lshl_add_u32 v13, v14, 3, v13
    v_add_u32 v{vW}, 16384, v13
    v_lshlrev_b32 v{vG}, 4, v10
    v_add_u32 v{vG}, {GB}, v{vG}
    s_mov_b32 s60, 0xffff0000
    s_mov_b32 s61, 0xffff0000
    """)
    def reads(U):
        S, u = U // 4, U % 4; sl = (S % 2) * SL
        L = [f"ds_read_b128 {R(XF+(U%2)*4,4)}, v{vX+u} offset:{sl}"]
        for T in range(5):
            for t in range(2):
                L.append(f"ds_read_b64_tr_b16 {R(WF+(U%2)*20+4*T+2*t,2)}, v{vW} offset:{sl+u*4608+t*288+T*64}")
        L += ["s_mov_b64 exec, s[60:61]", f"ds_read_b128 {R(WF+(U%2)*20+16,4)}, v{vG} offset:{(U%8)*32} ;nowaw", "s_mov_b64 exec, -1"]
        if U % 8 == 7: L.append(f"v_add_u32 v{vG}, 256, v{vG}")
        return L
    def mfmas(U):
        return [f"{M32} {R(ACC+16*T,16)}, {R(XF+(U%2)*4,4)}, {R(WF+(U%2)*20+4*T,4)}, {R(ACC+16*T,16) if U else 0}" for T in range(5)]
    a.wait_vm(tok[0]); a("s_barrier")
    stamp(a, 2)
    for x in reads(0): a(x)
    pend = []
    def step(U):
        S, u = U // 4, U % 4
        if u == 3 and S + 1 < 9:
            a.wait_vm(tok[S + 1]); a.wait_lds_all(); a("s_barrier")
            if S + 2 < 9: pend[:] = loads(S + 2); step.key = S + 2
        fill = reads(U + 1) if U + 1 < 36 else []
        n = 6 if len(pend) > 10 else len(pend)
        take = pend[:n]; del pend[:n]
        t = emit_mix(a, mfmas(U), fill + take)
        if t is not None: tok[step.key] = t
    for U in range(3): step(U)
    def body(it):
        for U in range(3 + 8 * it, 11 + 8 * it): step(U)
    a.roll(body, 4, "s65", name + "_l")
    step(35)
    stamp(a, 3)
    srd(a, 44, 14, WS_KV, KV_BYTES)
    srd(a, 40, 14, WS_GATE, 8192)
    a(f"""
    s_lshl_b32 s32, s5, 2
    s_add_u32 s32, s32, s6
    s_lshl_b32 s33, s7, 9
    s_add_u32 s33, s33, s32
    s_mul_i32 s35, s33, {KV_TILE}
    s_add_u32 s35, s35, {KV_V}
    s_mov_b32 s38, {64*KV_TILE}
    v_mul_u32_u24 v5, {KV_VR}, v10
    """)
    for T in range(5):
        c = ACC + 16 * T
        p = WF + (T % 4) * 8
        a(f"""
        v_add_u32 v1, {32*T}, v8
        v_mul_u32_u24 v2, 3641, v1
        v_lshrrev_b32 v2, 16, v2
        v_mul_u32_u24 v3, 18, v2
        v_sub_u32 v3, v1, v3
        """)
        if T == 4:
            a("""
            v_cmp_lt_u32 vcc, 15, v8
            v_and_b32 v4, 7, v8
            v_cndmask_b32 v2, v2, v4, vcc
            v_lshrrev_b32 v4, 3, v8
            v_add_u32 v4, 16, v4
            v_cndmask_b32 v3, v3, v4, vcc
            """)
        a(f"""
        v_mul_lo_u32 v2, v2, s38
        v_lshl_add_u32 v2, v3, 4, v2
        v_add_u32 v{150+T}, v2, v5
        """)
        for i in range(8): a(f"v_cvt_pk_bf16_f32 v{p+i}, v{c+2*i}, v{c+2*i+1}")
        if T == 4:
            a("""
            v_cmp_lt_u32 s[62:63], 23, v8
            v_mov_b32 v4, 0x3f803f80
            v_cndmask_b32 v4, v4, 0, s[62:63]
            """)
            for i in range(8): a(f"v_cndmask_b32 v{p+i}, v{p+i}, v4, vcc")
        for j in range(2): a(f"buffer_store_dwordx4 {R(p+4*j,4)}, v{150+T}, s[44:47], s35 offen offset:{2*KV_VR*j}")
    srd(a, 48, 14, WS_FLAG, 65536)
    a("""
    v_lshlrev_b32 v1, 4, v0
    v_mov_b32 v4, 0
    v_mov_b32 v5, 0
    v_mov_b32 v6, 0
    v_mov_b32 v7, 0
    s_lshl_b32 s36, s33, 10
    buffer_store_dwordx4 v[4:7], v1, s[48:51], s36 offen
    """)
    c = ACC + 64
    for r in range(16): a(f"v_mul_f32 v{c+r}, {f32h(-LOG2E)}, v{c+r}")
    for r in range(16): a(f"v_exp_f32 v{c+r}, v{c+r}")
    for r in range(16): a(f"v_add_f32 v{c+r}, 1.0, v{c+r}")
    for r in range(16): a(f"v_rcp_f32 v{c+r}, v{c+r}")
    a(f"""
    v_cmp_ne_u32 vcc, 16, v8
    v_lshlrev_b32 v1, 5, v10
    v_mov_b32 v2, 0x40000000
    v_cndmask_b32 v1, v1, v2, vcc
    s_lshl_b32 s36, s32, 7
    """)
    for j in range(2):
        for h in range(2):
            a(f"buffer_store_dwordx4 {R(c+8*j+4*h,4)}, v1, s[40:43], s36 offen offset:{64*j+16*h}")
    if STAMPS: a("s_waitcnt vmcnt(0)")
    stamp(a, 4); stamp(a, 5, True); stamp_flush(a, 0, 14, 6, 0)
    a("s_endpgm")

def gen_k1(name):
    a = Asm()
    a.raw(f".p2align 8\n.globl {name}\n.type {name},@function\n{name}:")
    a(f"""
    s_cmp_ge_u32 s2, 512
    s_cbranch_scc1 {name}_end
    s_load_dwordx4 s[8:11], s[0:1], 0
    s_load_dwordx2 s[12:13], s[0:1], 32
    s_load_dwordx2 s[14:15], s[0:1], 88
    s_load_dwordx2 s[66:67], s[0:1], 64
    s_load_dwordx2 s[68:69], s[0:1], 80
    s_and_b32 s3, s2, 7
    s_bfe_u32 s4, s2, 0x50003
    v_lshrrev_b32 v1, 6, v0
    v_and_b32 v0, 63, v0
    v_readfirstlane_b32 s6, v1
    s_lshr_b32 s5, s3, 2
    s_lshl_b32 s5, s5, 3
    s_lshr_b32 s24, s4, 2
    s_add_u32 s5, s5, s24
    s_and_b32 s24, s4, 3
    s_and_b32 s7, s3, 3
    """)
    stamp(a, 0, True); stamp(a, 1)
    a(f"""
    s_lshl_b32 s25, s2, 2
    s_add_u32 s25, s25, s6
    s_cmp_lg_u32 s25, 1024
    s_cbranch_scc1 {name}_nn
    s_memrealtime s[26:27]
    """)
    srd(a, 48, 68, 0, 256)
    a(f"""
    s_or_b32 s26, s26, 1
    v_mov_b32 v4, s26
    v_mov_b32 v5, s27
    v_lshlrev_b32 v3, 16, v0
    buffer_store_dwordx2 v[4:5], v3, s[48:51], 0 offen sc0 sc1
    """)
    a.label(name + "_nn")
    a("s_waitcnt lgkmcnt(0)")
    if 'nopf' not in EXP:
        a(f"""
        s_cmp_lt_u32 s2, 256
        s_cbranch_scc1 {name}_npf
        """)
        srd(a, 16, 8, 0, 2048 * 1152)
        srd(a, 20, 12, 0, 576 * 9216)
        srd(a, 40, 10, 0, 576 * 3456)
        a(f"""
        s_lshl_b32 s25, s4, 2
        s_add_u32 s25, s25, s6
        s_lshl_b32 s26, s25, 6
        v_add_u32 v2, s26, v0
        v_mul_u32_u24 v3, 7282, v2
        v_lshrrev_b32 v3, 16, v3
        v_mul_u32_u24 v4, 9, v3
        v_sub_u32 v4, v2, v4
        s_movk_i32 s27, 9216
        v_mul_lo_u32 v5, v3, s27
        v_lshl_add_u32 v5, v4, 7, v5
        s_mul_i32 s28, s7, 1152
        s_add_u32 s29, s28, 4608
        buffer_load_dword v250, v5, s[20:23], s29 offen
        v_lshlrev_b32 v6, 7, v2
        s_lshr_b32 s30, s3, 2
        s_mul_i32 s30, s30, {1024*1152}
        buffer_load_dword v251, v6, s[16:19], s30 offen
        v_mul_u32_u24 v7, 21846, v4
        v_lshrrev_b32 v7, 16, v7
        v_mul_u32_u24 v10, {1152-384}, v7
        v_lshl_add_u32 v10, v4, 7, v10
        s_movk_i32 s27, 3456
        v_mul_lo_u32 v7, v3, s27
        v_add_u32 v7, v7, v10
        s_mul_i32 s31, s7, 288
        s_add_u32 s31, s31, 28
        buffer_load_dword v252, v7, s[40:43], s31 offen
        s_add_u32 s30, s30, {8192*128}
        s_cmp_lt_u32 s25, 16
        s_cselect_b32 s30, s30, 0x7ff00000
        buffer_load_dword v253, v6, s[16:19], s30 offen
        buffer_load_dword v254, v5, s[20:23], s28 offen
        s_cmp_eq_u32 s24, 3
        s_cbranch_scc1 {name}_npf
        s_waitcnt vmcnt(0)
        """)
        a.label(name + "_npf")
    a(f"""
    s_cmp_eq_u32 s24, 3
    s_cbranch_scc1 {name}_qkv
    s_mul_i32 s7, s7, 3
    s_add_u32 s7, s7, s24
    s_cmp_ge_u32 s2, 256
    s_cbranch_scc1 {name}_z1
    """)
    pre = a
    txt = pre.text()
    def sub(lbl, fn, head=""):
        b = Asm(); b.lg = list(pre.lg); b.hist = list(pre.hist)
        if lbl: b.label(lbl)
        if head: b(head)
        fn(b)
        return b.text()
    txt += sub(None, lambda b: gen_z(b, name + "_z2", True), "s_setprio 1" if 'prio' in EXP else "")
    txt += sub(name + "_z1", lambda b: gen_z(b, name + "_z1", False))
    txt += sub(name + "_qkv", lambda b: gen_qk(b, name + "_qk"), f"s_cmp_ge_u32 s2, 256\ns_cbranch_scc1 {name}_v")
    txt += sub(name + "_v", lambda b: gen_v(b, name + "_v"))
    txt += f"{name}_end:\n    s_endpgm\n"
    return txt, dict(name=name, vgpr=256, sgpr=102 if STAMPS else 72, grid=512, block=256, lds=81920)
```

```python
from asmlib import *
from layout import *
import os
EXP = os.environ.get('K2EXP', '')

def srd(a, d, ptr, off, nbytes):
    a(f"""
    s_add_u32 s{d}, s{ptr}, {off}
    s_addc_u32 s{d+1}, s{ptr+1}, 0
    s_mov_b32 s{d+2}, {nbytes}
    s_mov_b32 s{d+3}, 0x00020000
    """)

def vpi(a, d, s, t):
    a(f"""
    v_and_b32 v{d}, 0x33, v{s}
    v_and_b32 v{t}, 4, v{s}
    v_lshl_or_b32 v{d}, v{t}, 1, v{d}
    v_and_b32 v{t}, 8, v{s}
    v_lshrrev_b32 v{t}, 1, v{t}
    v_or_b32 v{d}, v{d}, v{t}
    """)

FUSE = 'nofuse' not in EXP
SC = ' sc0 sc1' if FUSE else ''
M32 = "v_mfma_f32_32x32x16_bf16"
M16 = "v_mfma_f32_16x16x32_bf16"
def R(b, n): return f"v[{b}:{b+n-1}]"

CH_T = 8
CH_B = CH_T * KV_TILE
def gen_attn(a, name):
    QA = [16, 20]; QB = [24, 28]; KA = [32, 36]; KB = [40, 44]; V = [48, 56]; S = [64, 80]; P = [96, 104]; O = [112, 128]
    vKA, vKB, vV, vD = 1, 2, 3, 4
    a("s_setprio 3")
    a(f"""
    s_lshl_b32 s24, s3, 2
    s_lshr_b32 s25, s4, 3
    s_add_u32 s24, s24, s25
    s_and_b32 s25, s4, 7
    """)
    srd(a, 16, 14, WS_KV, KV_BYTES)
    srd(a, 20, 14, WS_QA, WS_GATE - WS_QA)
    srd(a, 40, 14, WS_AF, AF_BYTES)
    a(f"""
    s_mul_i32 s26, s24, {64*KV_TILE}
    s_mul_i32 s27, s6, 5120
    s_add_u32 s26, s26, s27
    v_lshlrev_b32 v{vD}, 4, v0
    s_mov_b32 s28, s27
    """)
    toks = {}
    def dma(c):
        L = []
        L.append("s_mov_b32 m0, s28")
        for j in range(4):
            L.append(f"buffer_load_dwordx4 v{vD}, s[16:19], s26 offen offset:{j*1024} lds")
        L.append("s_add_u32 m0, s28, 4096")
        L.append("s_add_u32 s29, s26, 4096")
        L.append(f"buffer_load_dwordx4 v{vD}, s[16:19], s29 offen lds")
        L.append(f"s_add_u32 s26, s26, {CH_B}")
        L.append(f"s_add_u32 s28, s28, {CH_B}")
        L.append(f"s_sub_u32 s29, s28, {3*CH_B}")
        L.append(f"s_cmp_ge_u32 s28, {3*CH_B}")
        L.append("s_cselect_b32 s28, s29, s28")
        return L
    def run_dma(c):
        for x in dma(c):
            t = a(x)
            if "buffer_load" in x: toks[c] = t
    run_dma(0)
    a(f"""
    s_lshl_b32 s30, s25, 3
    s_lshl_b32 s31, s6, 1
    s_add_u32 s30, s30, s31
    s_lshl_b32 s31, s24, 6
    s_add_u32 s31, s31, s30
    s_lshl_b32 s32, s31, 10
    s_lshl_b32 s33, s31, 7
    s_add_u32 s33, s33, {WS_QB - WS_QA}
    v_and_b32 v5, 31, v0
    v_lshlrev_b32 v6, 2, v5
    v_lshrrev_b32 v7, 5, v0
    v_lshl_add_u32 v8, v7, 30, v6
    """)
    for qt in range(2):
        a(f"buffer_load_dwordx4 {R(QA[qt],4)}, v{vD}, s[20:23], s32 offen offset:{qt*1024}")
        a(f"buffer_load_dword v{QB[qt]}, v8, s[20:23], s33 offen offset:{qt*128}")
    if FUSE:
        srd(a, 44, 14, WS_GATE, 8192)
        a("s_lshl_b32 s33, s30, 7")
        for qt in range(2): a(f"buffer_load_dword v{14+qt}, v6, s[44:47], s33 offen offset:{qt*128}")
    for qt in range(2):
        for r in range(1, 4): a(f"v_mov_b32 v{QB[qt]+r}, 0")
        a(f"v_mov_b32 v{KB[qt]+1}, 0x3f803f80")
        a(f"v_mov_b32 v{KB[qt]+2}, 0")
        a(f"v_mov_b32 v{KB[qt]+3}, 0")
        for r in range(16): a(f"v_mov_b32 v{O[qt]+r}, 0")
    a(f"v_mov_b32 v{vKA}, v{vD}")
    a(f"v_add_u32 v{vKB}, {KV_KB}, v6")
    vpi(a, 9, 5, 10)
    a(f"""
    v_cmp_lt_u32 vcc, 18, v5
    v_mov_b32 v11, 19
    v_cndmask_b32 v9, v9, v11, vcc
    v_mul_u32_u24 v10, {KV_VR}, v7
    v_lshl_add_u32 v{vV}, v9, 4, v10
    v_add_u32 v{vV}, {KV_V}, v{vV}
    """)
    a(f"s_mov_b32 s34, 0\ns_mov_b32 s35, 0\ns_mov_b32 s36, {CH_B}")
    def rdK(kt):
        o = (kt % CH_T) * KV_TILE
        return [f"ds_read_b128 {R(KA[kt%2],4)}, v{vKA} offset:{o}", f"ds_read_b32 v{KB[kt%2]}, v{vKB} offset:{o}"]
    def rdV(kt):
        o = (kt % CH_T) * KV_TILE
        return [f"ds_read_b128 {R(V[kt%2],4)}, v{vV} offset:{o}", f"ds_read_b128 {R(V[kt%2]+4,4)}, v{vV} offset:{o+2*KV_VR}"]
    def advK():
        return ["s_add_u32 s34, s34, 1", "s_cmp_eq_u32 s34, 3", f"s_cselect_b32 s37, {-2*CH_B}, s36", "s_cselect_b32 s34, 0, s34",
                f"v_add_u32 v{vKA}, s37, v{vKA}", f"v_add_u32 v{vKB}, s37, v{vKB}"]
    def advV():
        return ["s_add_u32 s35, s35, 1", "s_cmp_eq_u32 s35, 3", f"s_cselect_b32 s37, {-2*CH_B}, s36", "s_cselect_b32 s35, 0, s35",
                f"v_add_u32 v{vV}, s37, v{vV}"]
    def qk(n):
        kt, qt = n // 2, n % 2
        return [f"{M32} {R(S[n%2],16)}, {R(KA[kt%2],4)}, {R(QA[qt],4)}, 0",
                f"{M32} {R(S[n%2],16)}, {R(KB[kt%2],4)}, {R(QB[qt],4)}, {R(S[n%2],16)}"]
    def pv(n):
        kt, qt = n // 2, n % 2
        return [f"{M32} {R(O[qt],16)}, {R(V[kt%2],4)}, {R(P[n%2],4)}, {R(O[qt],16)}",
                f"{M32} {R(O[qt],16)}, {R(V[kt%2]+4,4)}, {R(P[n%2]+4,4)}, {R(O[qt],16)}"]
    def sm(n):
        s, p = S[n % 2], P[n % 2]
        L = []
        for i in range(8):
            L.append(f"v_exp_f32 v{s+2*i}, v{s+2*i}")
            L.append(f"v_exp_f32 v{s+2*i+1}, v{s+2*i+1}")
            if i > 0: L.append(f"v_cvt_pk_bf16_f32 v{p+i-1}, v{s+2*i-2}, v{s+2*i-1}")
        L.append(f"v_cvt_pk_bf16_f32 v{p+7}, v{s+14}, v{s+15}")
        return L
    a.wait_vm(toks[0])
    a("s_barrier")
    stamp(a, 2)
    a("s_setprio 1" if 'ahigh' in EXP else "s_setprio 0")
    for x in rdK(0): a(x)
    run_dma(1)
    if FUSE:
        srd(a, 48, 68, 0, 2304 * 1152)
        srd(a, 52, 66, 0, 576 * 1152)
        a(f"""
        s_and_b32 s56, s2, 255
        s_lshl_b32 s56, s56, 2
        s_add_u32 s56, s56, s6
        s_mul_i32 s57, s56, 2592
        s_mul_i32 s58, s56, 648
        s_and_b32 s57, s57, 0xfffffff0
        s_and_b32 s58, s58, 0xfffffff0
        """)
        for j in range(3): a(f"buffer_load_dwordx4 {R(144+4*j,4)}, v{vD}, s[48:51], s57 offen offset:{j*1024}")
        a(f"buffer_load_dwordx4 {R(156,4)}, v{vD}, s[52:55], s58 offen")
    for x in qk(0) + qk(1): a(x)
    for qt in range(2):
        s = S[qt]
        a(f"v_max3_f32 v10, v{s}, v{s+1}, v{s+2}")
        for i in range(3, 15, 2): a(f"v_max3_f32 v10, v{s+i}, v{s+i+1}, v10")
        a(f"v_max_f32 v10, v{s+15}, v10")
        a(f"""
        v_mov_b32 v11, v10
        v_permlane32_swap_b32 v10, v11
        v_max_f32 v10, v10, v11
        v_sub_f32 v10, 0, v10
        v_and_b32 v11, 0xffff0000, v10
        v_sub_f32 v12, v10, v11
        v_cvt_pk_bf16_f32 v12, v11, v12
        v_cmp_gt_u32 vcc, 32, v0
        v_mov_b32 v11, 0
        v_cndmask_b32 v{QB[qt]+1}, v11, v12, vcc
        """)
    for x in qk(0): a(x)
    NT = 128
    def slot(n):
        kt = n // 2
        pre = []
        fill = []
        if n % 2 == 0:
            if kt % CH_T == CH_T - 1 and kt + 1 < 64:
                c = kt // CH_T + 1
                a.wait_vm(toks[c])
                a("s_barrier")
                pre += advK()
                if c + 1 < 8: fill = ("dma", c + 1)
            if kt + 1 < 64: pre += rdK(kt + 1)
            pre += rdV(kt)
        LAG = int(os.environ.get("LAG", "2"))
        s_, p_ = S[n % 2], P[n % 2]; s1, p1 = S[(n - 1) % 2], P[(n - 1) % 2]
        q_ = qk(n + 1) if n + 1 < NT else [None, None]
        v_ = pv(n - 1) if n > 0 else [None, None]
        at = {0: v_[0], 2 * LAG: q_[0], 2 * LAG + 4: q_[1], 12 if LAG <= 2 else 14: v_[1]}
        seq = []
        extra = list(pre)
        dm = dma(fill[1]) if fill else []
        for e in range(16):
            if at.get(e): seq.append(at[e])
            seq.append(f"v_exp_f32 v{s_+e}, v{s_+e}")
            if e % 2 == 1:
                i = e // 2 - LAG
                if i >= 0: seq.append(f"v_cvt_pk_bf16_f32 v{p_+i}, v{s_+2*i}, v{s_+2*i+1}")
                elif n > 0: seq.append(f"v_cvt_pk_bf16_f32 v{p1+8+i}, v{s1+2*(8+i)}, v{s1+2*(8+i)+1}")
            if extra: seq.append(extra.pop(0))
            elif dm: seq.append(dm.pop(0))
        seq += extra + dm
        if n == NT - 1:
            for i in range(8 - LAG, 8): seq.append(f"v_cvt_pk_bf16_f32 v{p_+i}, v{s_+2*i}, v{s_+2*i+1}")
        if n % 2 == 0 and kt % CH_T == CH_T - 1: seq += advV()
        for x in seq:
            t = a(x)
            if "buffer_load" in x: toks[fill[1]] = t
    def body(c):
        for n in range(16 * c, 16 * c + 16): slot(n)
    a.roll(body, 8, "s38", name + "_al")
    for x in pv(NT - 1): a(x)
    stamp(a, 3)
    a("s_setprio 3")
    a("v_mov_b32 v10, 0")
    for qt in range(2):
        a(f"v_mul_f32 v11, 0x4d800000, v{O[qt]+10}")
        a("v_fma_f32 v10, v11, 0, v10")
        for r in range(10): a(f"v_fma_f32 v10, v{O[qt]+r}, 0, v10")
    a("v_cmp_u_f32 vcc, v10, v10")
    if 'forcefb' in EXP: a(f"s_branch {name}_fb")
    a(f"s_cbranch_vccnz {name}_fb")
    a.label(name + "_fin")
    a.fence()
    a(f"""
    s_mul_i32 s32, s30, {360*512}
    s_lshl_b32 s33, s24, 10
    s_add_u32 s33, s33, s32
    s_lshr_b32 s34, s24, 2
    s_lshl_b32 s34, s34, 9
    s_add_u32 s34, s34, {64*512}
    s_add_u32 s34, s34, s32
    s_and_b32 s35, s24, 3
    s_lshl_b32 s35, s35, 2
    s_add_u32 s34, s34, s35
    v_lshlrev_b32 v9, 4, v5
    v_lshl_add_u32 v9, v7, 30, v9
    """)
    for qt in range(2):
        o = O[qt]
        a(f"""
        v_mov_b32 v10, v{o+10}
        v_mov_b32 v11, v{o+10}
        v_permlane32_swap_b32 v10, v11
        v_rcp_f32 v10, v10
        """)
        if FUSE: a(f"v_mul_f32 v10, v{14+qt}, v10")
        for r in range(10): a(f"v_mul_f32 v{o+r}, v10, v{o+r}")
        for r in range(5): a(f"v_cvt_pk_bf16_f32 v{P[qt]+r}, v{o+2*r}, v{o+2*r+1}")
        a(f"buffer_store_dwordx4 {R(P[qt],4)}, v{vD}, s[40:43], s33 offen{SC}")
        a(f"buffer_store_dword v{P[qt]+4}, v9, s[40:43], s34 offen{SC}")
        if qt == 0:
            a(f"s_add_u32 s33, s33, {360*512}\ns_add_u32 s34, s34, {360*512}")
    if FUSE:
        srd(a, 44, 14, WS_FLAG, 65536)
        a(f"""
        s_waitcnt vmcnt(0)
        s_barrier
        s_lshl_b32 s32, s25, 5
        s_add_u32 s32, s32, s24
        s_lshl_b32 s32, s32, 7
        s_add_u32 s32, s32, 32768
        s_lshl_b32 s33, s6, 6
        v_add_lshl_u32 v9, v0, s33, 16
        v_mov_b32 v10, 1
        buffer_store_dword v10, v9, s[44:47], s32 offen{SC}
        """)
        if 'l2pf' in EXP:
            stamp(a, 6)
            a(f"""
            s_lshl_b32 s56, s4, 2
            s_add_u32 s56, s56, s6
            s_lshl_b32 s57, s56, 10
            """)
            for j in range(6):
                a(f"buffer_load_dwordx4 {R(144+4*(j%8),4)}, v{vD}, s[52:55], s57 offen ;nowaw")
                a(f"s_add_u32 s57, s57, {128*1024}")
            a("s_lshl_b32 s57, s56, 10")
            for j in range(21):
                a(f"buffer_load_dwordx4 {R(144+4*(j%8),4)}, v{vD}, s[48:51], s57 offen ;nowaw")
                a(f"s_add_u32 s57, s57, {128*1024}")
    if STAMPS: a("s_waitcnt vmcnt(0)")
    stamp(a, 4); stamp(a, 5, True); stamp_flush(a, 1, 14, 6, 0)
    a("s_endpgm")
    a.label(name + "_fb")
    a.fence()
    MX = [12, 13]
    a(f"""
    s_mul_i32 s26, s24, {64*KV_TILE}
    v_add_u32 v{vKB}, {KV_KB}, v6
    v_mul_u32_u24 v10, {KV_VR}, v7
    v_lshl_add_u32 v{vV}, v9, 4, v10
    v_add_u32 v{vV}, {KV_V}, v{vV}
    v_mov_b32 v{QB[0]+1}, 0
    v_mov_b32 v{QB[1]+1}, 0
    v_mov_b32 v12, 0xff800000
    v_mov_b32 v13, 0xff800000
    s_mov_b32 s29, s26
    s_mov_b32 s38, 64
    """)
    a.label(name + "_fb1")
    a(f"buffer_load_dwordx4 {R(KA[0],4)}, v{vD}, s[16:19], s29 offen")
    a(f"buffer_load_dword v{KB[0]}, v{vKB}, s[16:19], s29 offen")
    for x in qk(0) + qk(1): a(x)
    for qt in range(2):
        for i in range(0, 16, 2): a(f"v_max3_f32 v{MX[qt]}, v{S[qt]+i}, v{S[qt]+i+1}, v{MX[qt]}")
    a(f"s_add_u32 s29, s29, {KV_TILE}\ns_sub_u32 s38, s38, 1\ns_cmp_lg_u32 s38, 0")
    a.fence()
    a(f"s_cbranch_scc1 {name}_fb1")
    for qt in range(2):
        a(f"v_mov_b32 v11, v{MX[qt]}\nv_permlane32_swap_b32 v{MX[qt]}, v11\nv_max_f32 v{MX[qt]}, v{MX[qt]}, v11")
        for r in range(16): a(f"v_mov_b32 v{O[qt]+r}, 0")
    a("s_mov_b32 s29, s26\ns_mov_b32 s38, 64")
    a.fence()
    a.label(name + "_fb2")
    a(f"buffer_load_dwordx4 {R(KA[0],4)}, v{vD}, s[16:19], s29 offen")
    a(f"buffer_load_dword v{KB[0]}, v{vKB}, s[16:19], s29 offen")
    a(f"buffer_load_dwordx4 {R(V[0],4)}, v{vV}, s[16:19], s29 offen")
    a(f"buffer_load_dwordx4 {R(V[0]+4,4)}, v{vV}, s[16:19], s29 offen offset:{2*KV_VR}")
    for x in qk(0) + qk(1): a(x)
    for qt in range(2):
        for r in range(16): a(f"v_sub_f32 v{S[qt]+r}, v{S[qt]+r}, v{MX[qt]}")
        for x in sm(qt): a(x)
        for x in pv(qt): a(x)
    a(f"s_add_u32 s29, s29, {KV_TILE}\ns_sub_u32 s38, s38, 1\ns_cmp_lg_u32 s38, 0")
    a.fence()
    a(f"s_cbranch_scc1 {name}_fb2")
    a(f"s_branch {name}_fin")

GSL = 18432
def gen_spat(a, name):
    ACC = 16
    ACX = 80
    ZR = 88
    B32 = 152
    B16 = 184
    A16 = 200
    vB32, vB16, vZX = 208, 216, 220
    vDZ, vDX, vDW = 222, 223, 224
    Z1 = ZR
    a("s_setprio 2")
    a(f"""
    s_lshr_b32 s24, s3, 2
    s_lshl_b32 s24, s24, 3
    s_lshr_b32 s25, s4, 2
    s_add_u32 s24, s24, s25
    s_and_b32 s25, s3, 3
    s_lshl_b32 s25, s25, 2
    s_and_b32 s26, s4, 3
    s_add_u32 s25, s25, s26
    """)
    srd(a, 20, 8, 0, 2048 * 4096)
    a(f"""
    s_lshl_b32 s26, s24, 7
    s_lshl_b32 s27, s6, 5
    s_add_u32 s26, s26, s27
    v_lshrrev_b32 v4, 3, v0
    v_and_b32 v5, 7, v0
    s_lshl_b32 s55, s6, 12
    s_mov_b32 s57, 0
    """)
    for j in range(4):
        a(f"""
        v_add_u32 v6, {8*j}, v4
        v_bfe_u32 v7, v6, 1, 3
        v_xor_b32 v7, v7, v5
        v_add_u32 v6, s26, v6
        v_lshlrev_b32 v6, 12, v6
        v_lshl_add_u32 v6, v7, 4, v6
        v_subrev_u32 v{vDW+j}, {1024*j}, v6
        """)
    srd(a, 16, 14, WS_Z2, Z_BYTES)
    a(f"""
    s_lshl_b32 s26, s25, 2
    s_add_u32 s26, s26, s6
    s_lshl_b32 s26, s26, 17
    v_lshlrev_b32 v1, 4, v0
    v_add_u32 v{vDZ}, s26, v1
    s_lshr_b32 s26, s25, 1
    s_add_u32 s26, s26, 64
    s_lshl_b32 s26, s26, 17
    s_and_b32 s27, s25, 1
    s_lshl_b32 s27, s27, 8
    s_add_u32 s26, s26, s27
    s_lshl_b32 s27, s6, 10
    s_add_u32 s26, s26, s27
    v_lshrrev_b32 v2, 4, v0
    v_and_b32 v3, 15, v0
    v_lshlrev_b32 v4, 9, v2
    v_lshl_add_u32 v4, v3, 4, v4
    v_add_u32 v{vDX}, s26, v4
    s_lshl_b32 s54, s6, 9
    s_add_u32 s54, s54, 16384
    s_mov_b32 s56, 0
    s_mov_b64 s[52:53], 0xffffffff
    """)
    tw = {}
    def loads(J):
        sl = (J % 4) * GSL
        L = [f"s_add_u32 m0, s55, {sl}"]
        L += [f"buffer_load_dwordx4 v{vDW+j}, s[20:23], s57 offen offset:{1024*j} lds" for j in range(4)]
        L += [f"s_add_u32 m0, s54, {sl}", "s_mov_b64 exec, s[52:53]",
              f"buffer_load_dwordx4 v{vDX}, s[16:19], s56 offen lds", "s_mov_b64 exec, -1"]
        L += [f"buffer_load_dwordx4 {R(ZR+(J%4)*16+4*u,4)}, v{vDZ}, s[16:19], s56 offen offset:{1024*u}" for u in range(4)]
        L += ["s_add_u32 s57, s57, 128", "s_add_u32 s56, s56, 4096"]
        return L
    def run(L, k):
        for x in L:
            t = a(x)
            if x.endswith(" lds"): tw[k] = t
    for J in range(3): run(loads(J), J)
    srd(a, 40, 14, WS_AF, AF_BYTES)
    srd(a, 44, 14, WS_Z1, Z_BYTES)
    srd(a, 48, 10, 0, 4096)
    srd(a, 60, 14, WS_GATE, 8192)
    vpi(a, 6, 3, 7)
    a(f"""
    v_lshlrev_b32 v7, 8, v2
    v_lshl_add_u32 v7, v6, 4, v7
    v_add_u32 v{vZX}, 16384, v7
    v_and_b32 v6, 31, v0
    v_lshrrev_b32 v7, 5, v0
    v_bfe_u32 v8, v6, 1, 3
    v_xor_b32 v8, v8, v7
    v_lshlrev_b32 v8, 4, v8
    v_lshl_add_u32 v{vB32}, v6, 7, v8
    v_xor_b32 v{vB32+1}, 32, v{vB32}
    v_xor_b32 v{vB32+2}, 64, v{vB32}
    v_xor_b32 v{vB32+3}, 96, v{vB32}
    v_bfe_u32 v8, v3, 1, 3
    v_xor_b32 v8, v8, v2
    v_lshlrev_b32 v8, 4, v8
    v_lshl_add_u32 v8, v3, 7, v8
    v_add_u32 v{vB16}, s55, v8
    v_xor_b32 v{vB16+1}, 64, v{vB16}
    """)
    for i in range(4): a(f"v_add_u32 v{vB32+4+i}, {2*GSL}, v{vB32+i}")
    for i in range(2): a(f"v_add_u32 v{vB16+2+i}, {2*GSL}, v{vB16+i}")
    a(f"v_add_u32 v{vZX+1}, {2*GSL}, v{vZX}")
    for r in range(72): a(f"v_mov_b32 v{ACC+r}, 0")
    NU = 128
    def reads(U):
        J, u = U // 4, U % 4
        hi = (J % 4) // 2; sl = (J % 2) * GSL
        L = [f"ds_read_b128 {R(B32+(U%2)*16+4*tl,4)}, v{vB32+4*hi+u} offset:{sl+tl*4096}" for tl in range(4)]
        if u % 2 == 0:
            v = u // 2
            L.append(f"ds_read_b128 {R(A16+4*v,4)}, v{vZX+hi} offset:{sl+v*1024}")
            L += [f"ds_read_b128 {R(B16+8*v+4*tl,4)}, v{vB16+2*hi+v} offset:{sl+tl*2048}" for tl in range(2)]
        return L
    def mfmas(U):
        J, u = U // 4, U % 4
        L = [f"{M32} {R(ACC+16*tl,16)}, {R(ZR+(J%4)*16+4*u,4)}, {R(B32+(U%2)*16+4*tl,4)}, {R(ACC+16*tl,16)}" for tl in range(4)]
        v, tl = u // 2, u % 2
        L.append(f"{M16} {R(ACX+4*tl,4)}, {R(A16+4*v,4)}, {R(B16+8*v+4*tl,4)}, {R(ACX+4*tl,4)}")
        return L
    def z1_loads():
        L = ["s_lshl_b32 s26, s24, 2",
             "s_lshl_b32 s27, s25, 2", "s_add_u32 s27, s27, s6",
             "s_mul_i32 s28, s26, 72", "s_add_u32 s28, s28, s27", "s_lshl_b32 s28, s28, 11"]
        for tl in range(4):
            for j in range(2):
                L.append(f"buffer_load_dwordx4 {R(Z1+(tl*2+j)*4,4)}, v1, s[44:47], s28 offen offset:{j*1024}")
            L.append(f"s_add_u32 s28, s28, {72*2048}")
        L += ["s_add_u32 s30, s26, s6", "s_mul_i32 s31, s30, 72", "s_add_u32 s31, s31, 64", "s_lshl_b32 s31, s31, 11",
              "s_lshl_b32 s32, s25, 10", "s_add_u32 s31, s31, s32",
              "v_lshrrev_b32 v9, 5, v0", "v_lshlrev_b32 v9, 9, v9", "v_lshl_add_u32 v9, v3, 4, v9", "v_and_b32 v10, 1, v2", "v_lshl_add_u32 v9, v10, 3, v9"]
        for tl in range(2):
            L.append(f"buffer_load_dwordx2 {R(Z1+32+2*tl,2)}, v9, s[44:47], s31 offen offset:{tl*256}")
        L += ["v_and_b32 v10, 31, v0", "v_lshlrev_b32 v10, 1, v10", "s_lshl_b32 s32, s26, 6", "v_lshlrev_b32 v11, 1, v3", "s_lshl_b32 s33, s30, 6"]
        for tl in range(4):
            L.append(f"buffer_load_ushort v{Z1+36+tl}, v10, s[48:51], s32 offen offset:{tl*64}")
        for tl in range(2):
            L.append(f"buffer_load_ushort v{Z1+40+tl}, v11, s[48:51], s33 offen offset:{tl*32}")
        if FUSE:
            L += ["v_lshlrev_b32 v10, 1, v10", "v_lshlrev_b32 v11, 1, v11", "s_lshl_b32 s32, s32, 1", "s_lshl_b32 s33, s33, 1"]
            for tl in range(4):
                L.append(f"buffer_load_dword v{Z1+42+tl}, v10, s[60:63], s32 offen offset:{tl*128}")
            for tl in range(2):
                L.append(f"buffer_load_dword v{228+tl}, v11, s[60:63], s33 offen offset:{tl*64}")
            L += [x.strip() for x in out_setup(a)]
        return L
    a.wait_vm(tw[0])
    a("s_barrier")
    stamp(a, 2)
    for x in reads(0): a(x)
    pend = []
    def step(U):
        J, u = U // 4, U % 4
        fill = []
        if u == 3 and J + 1 < 32:
            a.wait_vm(tw[J + 1])
            a.wait_lds_all()
            a("s_barrier")
        if U + 1 < NU: fill += reads(U + 1)
        if u == 0:
            pend[:] = loads(J + 3) if J + 3 < 32 else (z1_loads() if J == 31 else [])
            pend.append(None)
            step.key = J + 3
            step.n = len(pend)
        mf = mfmas(U)
        take = []
        if u < 3:
            want = step.n * (u + 1) // 3
            while step.n - len(pend) < want and pend:
                x = pend.pop(0)
                if x is not None: take.append(x)
            while take and pend and pend[0] is not None and (take[-1].startswith("s_mov_b64 exec, s") or pend[0].startswith("s_mov_b64 exec, -1") or take[-1].startswith("s_add_u32 m0")):
                take.append(pend.pop(0))
        fill += take
        seq = []
        n, m = len(mf), len(fill); k = 0
        for i, x in enumerate(mf):
            seq.append(x)
            tgt = (i + 1) * m // n
            while k < tgt or (0 < k < m and (fill[k-1].startswith("s_mov_b64 exec, s") or fill[k].startswith("s_mov_b64 exec, -1"))):
                seq.append(fill[k]); k += 1
        seq += fill[k:]
        for x in seq:
            t = a(x)
            if x.endswith(" lds"): tw[step.key] = t
    LOWIT = int(os.environ.get("LOWIT", "3"))
    a(f"s_mov_b32 s64, {LOWIT}")
    if LOWIT > 0: a("s_setprio 0")
    def body(it):
        for U in range(16 * it, 16 * it + 16): step(U)
        a(f"""
        s_sub_u32 s64, s64, 1
        s_cmp_lg_u32 s64, 0
        s_cbranch_scc1 1f
        s_setprio 2
        """)
        a.raw("1:")
    a.roll(body, 8, "s65", name + "_gl")
    a("s_setprio 2")
    stamp(a, 3)
    for i in range(6): a(f"v_lshlrev_b32 v{Z1+36+i}, 16, v{Z1+36+i}")
    a(f"""
    s_mul_i32 s34, s26, {360*512}
    s_lshl_b32 s35, s27, 11
    s_add_u32 s34, s34, s35
    s_add_u32 s34, s34, {72*512}
    s_mul_i32 s36, s30, {360*512}
    s_lshl_b32 s37, s25, 10
    s_add_u32 s36, s36, s37
    s_add_u32 s36, s36, {(72+256)*512}
    """)
    T = B32
    GT = [Z1 + 42 + i for i in range(4)] + [228, 229]
    if FUSE:
        for i in range(6):
            a(f"v_sub_f32 v{GT[i]}, 1.0, v{GT[i]}")
            a(f"v_mul_f32 v{Z1+36+i}, v{GT[i]}, v{Z1+36+i}")
    def fin(c, z, nb, bi, t):
        bias = Z1 + 36 + bi
        for p in range(nb):
            a(f"v_lshlrev_b32 v{t+8}, 16, v{z+p}")
            a(f"v_and_b32 v{t+9}, 0xffff0000, v{z+p}")
            for e in range(2):
                if FUSE: a(f"v_fma_f32 v{c+2*p+e}, v{c+2*p+e}, v{GT[bi]}, v{bias}")
                else: a(f"v_add_f32 v{c+2*p+e}, v{bias}, v{c+2*p+e}")
            for e in range(2): a(f"v_mul_f32 v{c+2*p+e}, v{c+2*p+e}, v{t+8+e}")
            a(f"v_cvt_pk_bf16_f32 v{t+p}, v{c+2*p}, v{c+2*p+1}")
    k = 0
    for tl in range(4):
        for j in range(2):
            t = T + (k % 4) * 12; k += 1
            fin(ACC + tl * 16 + 8 * j, Z1 + (tl * 2 + j) * 4, 4, tl, t)
            a(f"buffer_store_dwordx4 {R(t,4)}, v1, s[40:43], s34 offen offset:{j*1024}{SC}")
        a(f"s_add_u32 s34, s34, {360*512}")
    for tl in range(2):
        t = T + (k % 4) * 12; k += 1
        fin(ACX + 4 * tl, Z1 + 32 + 2 * tl, 2, 4 + tl, t)
        stok = a(f"buffer_store_dwordx2 {R(t,2)}, v9, s[40:43], s36 offen offset:{tl*256}{SC}")
    if FUSE:
        gen_out(a, name, stok)
        return
    if STAMPS: a("s_waitcnt vmcnt(0)")
    stamp(a, 4); stamp(a, 5, True); stamp_flush(a, 1, 14, 6, 0)
    a("s_endpgm")

def poll(a, lbl, voff, soff, vpre=None):
    if vpre is not None:
        a(f"v_cmp_ne_u32 vcc, 1, v{vpre}")
        a(f"s_cbranch_vccz {lbl}_ok")
    saved = list(a.vm)
    a("s_mov_b32 s38, 0x40000")
    a.label(lbl)
    a(f"""
    buffer_load_dword v12, v{voff}, s[72:75], {soff} offen sc0 sc1
    s_waitcnt vmcnt(0)
    v_cmp_ne_u32 vcc, 1, v12
    s_sub_u32 s38, s38, 1
    s_cbranch_vccz {lbl}_ok
    s_cmp_eq_u32 s38, 0
    s_cbranch_scc1 {lbl}_ok
    s_sleep 4
    s_branch {lbl}
    """)
    a.label(lbl + "_ok")
    if vpre is not None: a.vm = saved

vFU, vFO, vSO, vSU = 230, 231, 232, 233
def out_setup(a):
    return f"""
    s_add_u32 s72, s14, {WS_FLAG}
    s_addc_u32 s73, s15, 0
    s_mov_b32 s74, 65536
    s_mov_b32 s75, 0x00020000
    s_mul_i32 s76, s3, 30
    s_add_u32 s76, s76, s4
    s_min_u32 s76, s76, 233
    s_mul_i32 s77, s76, 7282
    s_lshr_b32 s77, s77, 16
    s_mul_i32 s78, s77, 9
    s_sub_u32 s78, s76, s78
    s_mul_i32 s58, s77, 80
    s_add_u32 s38, s58, 79
    s_min_u32 s38, s38, 2047
    s_lshr_b32 s59, s58, 7
    s_lshr_b32 s39, s38, 7
    s_sub_u32 s39, s39, s59
    s_lshl_b32 s59, s59, 11
    v_and_b32 v6, 1, v2
    v_mul_u32_u24 v6, s39, v6
    v_lshlrev_b32 v6, 11, v6
    v_lshl_add_u32 v{vFU}, v3, 7, v6
    s_lshr_b32 s29, s58, 8
    s_lshr_b32 s39, s38, 8
    s_sub_u32 s39, s39, s29
    s_lshl_b32 s29, s29, 12
    s_add_u32 s29, s29, 32768
    v_lshrrev_b32 v6, 5, v0
    v_mul_u32_u24 v6, s39, v6
    v_and_b32 v7, 31, v0
    v_lshlrev_b32 v6, 12, v6
    v_lshl_add_u32 v{vFO}, v7, 7, v6
    buffer_load_dword v{vSO}, v{vFO}, s[72:75], s29 offen sc0 sc1
    """.strip().split("\n")

def gen_out(a, name, store_tok):
    D = 4
    ACC = 16; AR = 96; WF = 176; vA = 208; vDW = 213; vTR = 220
    OFIRST = 'olast' not in EXP
    order = (["a"] * 4 + ["b"] + ["n"] * 18) if OFIRST else (["n"] * 18 + ["a"] * 4 + ["b"])
    NSUB = 23
    srd(a, 16, 68, 0, 2304 * 1152)
    srd(a, 20, 66, 0, 576 * 1152)
    srd(a, 48, 70, 0, 2048 * 1152)
    a(f"""
    s_movk_i32 s35, 1152
    s_lshl_b32 s37, s78, 7
    s_lshl_b32 s54, s6, 12
    v_lshrrev_b32 v4, 3, v0
    v_and_b32 v5, 7, v0
    v_and_b32 v6, 2, v4
    v_xor_b32 v5, v5, v6
    """)
    def wrows(mode):
        L = []
        for j in range(4):
            L += [f"v_add_u32 v6, {8*j + (2*(j//2) if mode == 'a' else 0)}, v4"]
            if mode == "b": L += ["v_lshrrev_b32 v7, 1, v6", "v_lshl_add_u32 v6, v7, 4, v6", "v_add_u32 v6, 16, v6"]
            L += ["v_mul_lo_u32 v6, v6, s35", f"v_xor_b32 v7, {(j&1)<<2}, v5", "v_lshl_add_u32 v6, v7, 4, v6", "v_add_u32 v6, s37, v6",
                  f"v_subrev_u32 v{vDW+j}, {1024*j}, v6"]
        rows = {"n": 32, "a": 36, "b": 288}[mode]
        L += [f"s_mul_i32 s57, s6, {rows*1152}"]
        return L
    tw = {}
    def first(i): return i == 0 or order[i] != order[i - 1]
    def wload(i):
        m = order[i]
        L = wrows(m) if first(i) else []
        sr = "s[16:19]" if m == "n" else "s[20:23]"
        L.append(f"s_add_u32 m0, s54, {(i%D)*16384}")
        L += [f"buffer_load_dwordx4 v{vDW+j}, {sr}, s57 offen offset:{1024*j} lds" for j in range(4)]
        L.append(f"s_add_u32 s57, s57, {(128 if m == 'n' else 144)*1152}")
        return L
    def aload(i):
        m = order[i]
        L = []
        if first(i): L += ["s_lshl_b32 s56, s6, 11", f"s_add_u32 s56, s56, {dict(n=72, a=0, b=64)[m]*512}"]
        L += [f"buffer_load_dwordx4 {R(AR+(i%D)*20+4*rt,4)}, v{vA+rt}, s[40:43], s56 offen sc0 sc1" for rt in range(5)]
        L.append("s_add_u32 s56, s56, 8192")
        return L
    def run(L, i):
        for x in L:
            t = a(x)
            if x.endswith(" lds"): tw[i] = t
    def publish():
        a.wait_vm(store_tok)
        a("s_barrier")
        stamp(a, 4)
        a(f"""
        s_lshl_b32 s32, s24, 4
        s_add_u32 s32, s32, s25
        s_lshl_b32 s32, s32, 7
        s_lshl_b32 s33, s6, 6
        v_add_lshl_u32 v9, v0, s33, 16
        v_mov_b32 v10, 1
        buffer_store_dword v10, v9, s[72:75], s32 offen sc0 sc1
        """)
    a(f"""
    s_mul_i32 s32, s3, 30
    s_add_u32 s32, s32, s4
    s_cmp_ge_u32 s4, 30
    s_cselect_b32 s32, 999, s32
    s_cmp_lt_u32 s32, 234
    s_cbranch_scc1 {name}_go
    """)
    saved = list(a.vm)
    publish()
    a(f"s_branch {name}_done")
    a.label(name + "_go")
    a.vm = saved
    for i in range(D - 1): run(wload(i), i)
    a(f"""
    s_mul_i32 s30, s77, 5
    v_lshlrev_b32 v6, 9, v2
    v_lshl_add_u32 v6, v3, 4, v6
    """)
    for rt in range(5):
        a(f"""
        s_add_u32 s32, s30, {rt}
        s_lshr_b32 s33, s32, 1
        s_mul_i32 s33, s33, {360*512}
        s_and_b32 s32, s32, 1
        s_lshl_b32 s32, s32, 8
        s_add_u32 s33, s33, s32
        v_add_u32 v{vA+rt}, s33, v6
        """)
    a(f"""
    v_bfe_u32 v6, v0, 2, 2
    v_lshl_add_u32 v7, v2, 3, v6
    v_lshlrev_b32 v7, 7, v7
    v_lshrrev_b32 v8, 1, v6
    v_and_b32 v9, 1, v2
    v_lshl_or_b32 v8, v9, 1, v8
    v_xor_b32 v8, s6, v8
    v_lshl_add_u32 v7, v8, 5, v7
    v_and_b32 v6, 3, v0
    v_lshl_add_u32 v7, v6, 3, v7
    v_add_u32 v{vTR}, s54, v7
    v_xor_b32 v{vTR+1}, 32, v{vTR}
    v_xor_b32 v{vTR+2}, 64, v{vTR}
    v_xor_b32 v{vTR+3}, 96, v{vTR}
    """)
    def reads(i):
        return [f"ds_read_b64_tr_b16 {R(WF+(i%2)*16+4*ct+2*t,2)}, v{vTR+ct} offset:{(i%D)*16384+t*512}" for ct in range(4) for t in range(2)]
    def mfmas(i):
        return [f"{M16} {R(ACC+(ct*5+rt)*4,4)}, {R(WF+(i%2)*16+4*ct,4)}, {R(AR+(i%D)*20+4*rt,4)}, {R(ACC+(ct*5+rt)*4,4) if i else 0}"
                for rt in range(5) for ct in range(4)]
    if OFIRST:
        publish()
        poll(a, name + "_po", vFO, "s29", vSO)
        stamp(a, 7)
        for i in range(D): run(aload(i), None)
        nA = D
    else:
        publish()
        poll(a, name + "_pu", vFU, "s59")
        stamp(a, 6)
        for i in range(D - 1): run(aload(i), None)
        nA = D - 1
    a.wait_vm(tw[0])
    for x in reads(0): a(x)
    SW = 5 if OFIRST else 18
    for i in range(NSUB):
        n = i + D - 1
        fill = []
        if i + 1 < NSUB:
            a.wait_vm(tw[i + 1])
            fill += reads(i + 1)
        if n < NSUB: fill += wload(n)
        if OFIRST:
            if i == SW - 2: fill += [f"buffer_load_dword v{vSU}, v{vFU}, s[72:75], s59 offen sc0 sc1"]
            if i == SW - 1:
                poll(a, name + "_pu", vFU, "s59", vSU)
                stamp(a, 6)
            lim = SW - 1 if i < SW - 1 else NSUB - 1
            while nA <= min(n, lim):
                fill = aload(nA) + fill if i == SW - 1 else fill + aload(nA); nA += 1
                if i == SW - 1: break
            if i == SW - 1:
                while nA <= min(n, lim): fill += aload(nA); nA += 1
        else:
            if n == SW - 2: fill += [f"buffer_load_dword v{vSO}, v{vFO}, s[72:75], s29 offen sc0 sc1"]
            if n == SW:
                poll(a, name + "_po", vFO, "s29", vSO)
                stamp(a, 7)
            if n < NSUB: fill += aload(n)
        mf = mfmas(i)
        for x in interleave(mf, fill):
            t = a(x)
            if x.endswith(" lds"): tw[n] = t
    a.wait_lds_all()
    a("s_barrier")
    a("v_lshlrev_b32 v6, 4, v0")
    for c in range(1, 4):
        a(f"s_xor_b32 s32, s6, {c}\ns_mul_i32 s32, s32, {3*5120}\nv_add_u32 v7, s32, v6")
        for rt in range(5):
            a(f"ds_write_b128 v7, {R(ACC+(c*5+rt)*4,4)} offset:{(c-1)*5120+rt*1024}")
    a(f"""
    s_mul_i32 s32, s6, {3*5120}
    v_add_u32 v7, s32, v6
    v_add_u32 v8, s58, v3
    v_mul_lo_u32 v8, v8, s35
    s_lshl_b32 s32, s6, 5
    s_add_u32 s32, s32, s37
    v_lshl_add_u32 v8, v2, 3, v8
    v_add_u32 v8, s32, v8
    s_waitcnt lgkmcnt(0)
    s_barrier
    """)
    for rt in range(5):
        for c in range(3):
            a(f"ds_read_b128 {R(AR+(rt*3+c)*4,4)}, v7 offset:{c*5120+rt*1024}")
    for rt in range(5):
        o = ACC + rt * 4
        for c in range(3):
            for h in range(4): a(f"v_add_f32 v{o+h}, v{o+h}, v{AR+(rt*3+c)*4+h}")
        a(f"v_cvt_pk_bf16_f32 v{WF+2*rt}, v{o}, v{o+1}\nv_cvt_pk_bf16_f32 v{WF+2*rt+1}, v{o+2}, v{o+3}")
        a(f"s_mov_b32 s32, {rt*16*1152}")
        a(f"buffer_store_dwordx2 {R(WF+2*rt,2)}, v8, s[48:51], s32 offen")
    a.label(name + "_done")
    if STAMPS: a("s_waitcnt vmcnt(0)")
    stamp(a, 2); stamp(a, 5, True); stamp_flush(a, 1, 14, 6, 0)
    a("s_endpgm")

def gen_k2(name):
    a = Asm()
    a.raw(f".p2align 8\n.globl {name}\n.type {name},@function\n{name}:")
    a(f"""
    s_cmp_ge_u32 s2, 512
    s_cbranch_scc1 {name}_end
    s_load_dwordx4 s[8:11], s[0:1], 40
    s_load_dwordx2 s[14:15], s[0:1], 88
    s_load_dwordx2 s[66:67], s[0:1], 16
    s_load_dwordx2 s[68:69], s[0:1], 56
    s_load_dwordx2 s[70:71], s[0:1], 72
    s_and_b32 s3, s2, 7
    s_bfe_u32 s4, s2, 0x50003
    v_lshrrev_b32 v1, 6, v0
    v_and_b32 v0, 63, v0
    v_readfirstlane_b32 s6, v1
    """)
    stamp(a, 0, True); stamp(a, 1)
    a("s_cmp_ge_u32 s2, 256")
    a(f"s_cbranch_scc1 {name}_g")
    if 'noattn' in EXP: a("s_endpgm")
    pre = a
    a = Asm(); a.lg = list(pre.lg); a.hist = list(pre.hist)
    gen_attn(a, name)
    at = a
    a = Asm(); a.lg = list(pre.lg); a.hist = list(pre.hist)
    a.label(name + "_g")
    if 'nospat' in EXP: a("s_endpgm")
    gen_spat(a, name)
    a.label(name + "_end")
    a("s_endpgm")
    text = pre.text() + at.text() + a.text()
    return text, dict(name=name, vgpr=256, sgpr=102 if STAMPS else 80, grid=512, block=256, lds=81920)
```

```python
import re

_REG = re.compile(r'\b([vas])(\d+)\b|\b([vas])\[(\d+):(\d+)\]|\b(vcc|exec|m0|scc)\b')

def regs_of(tok):
    out = []
    for m in _REG.finditer(tok):
        if m.group(1):
            out.append((m.group(1), int(m.group(2))))
        elif m.group(3):
            out += [(m.group(3), i) for i in range(int(m.group(4)), int(m.group(5)) + 1)]
        else:
            out.append((m.group(6), 0))
    return out

TRANS = ("v_exp_", "v_log_", "v_rcp_", "v_rsq_", "v_sqrt_", "v_sin_", "v_cos_")

def split_ops(s):
    ops, cur, d = [], "", 0
    for ch in s:
        if ch == '[': d += 1
        if ch == ']': d -= 1
        if ch == ',' and d == 0:
            ops.append(cur.strip()); cur = ""
        else:
            cur += ch
    if cur.strip(): ops.append(cur.strip())
    return ops

class Inst:
    __slots__ = ("text", "mn", "kind", "rd", "wr", "passes", "srcc", "srcab", "dpp", "wide", "lds_dma", "nstates", "tag")
    def __init__(self, text):
        self.text = text.strip()
        body = self.text.split(";")[0].strip()
        parts = body.split(None, 1)
        self.mn = mn = parts[0]
        rest = parts[1] if len(parts) > 1 else ""
        ops = split_ops(rest)
        self.rd, self.wr = [], []
        self.passes = 0; self.srcc = []; self.srcab = []; self.dpp = False; self.wide = False; self.lds_dma = False
        self.nstates = 1
        self.tag = None
        R = lambda i: regs_of(ops[i]) if i < len(ops) else []
        allr = lambda a: [r for o in ops[a:] for r in regs_of(o)]
        if mn.startswith("v_mfma"):
            self.kind = "mfma"
            self.passes = 8 if "32x32x16" in mn else 4
            self.wr = R(0); self.srcab = R(1) + R(2); self.srcc = R(3); self.rd = self.srcab + self.srcc
        elif mn.startswith("v_"):
            self.kind = "trans" if mn.startswith(TRANS) else "valu"
            if mn.startswith("v_permlane") and "swap" in mn:
                self.wr = R(0) + R(1); self.rd = R(0) + R(1); self.kind = "permlane"
            elif mn.startswith("v_cmp"):
                self.wr = R(0); self.rd = allr(1)
            elif mn.startswith(("v_readfirstlane", "v_readlane")):
                self.wr = R(0); self.rd = allr(1); self.kind = "readlane"
            elif mn.startswith(("v_add_co", "v_sub_co", "v_addc_co", "v_subb_co")):
                self.wr = R(0) + R(1); self.rd = allr(2)
            else:
                self.wr = R(0); self.rd = allr(1)
                if mn.startswith(("v_fmac", "v_pk_fmac", "v_writelane")) or "_dpp" in mn or "bank_mask" in rest or "dst_unused:UNUSED_PRESERVE" in rest or "op_sel" in rest and mn.startswith("v_cvt"):
                    self.rd = self.rd + self.wr
            if "_dpp" in mn or "row_" in rest or "quad_perm" in rest:
                self.dpp = True
        elif mn.startswith("ds_"):
            self.kind = "lds"
            if mn.startswith(("ds_write", "ds_add", "ds_max", "ds_min", "ds_or")) and "rtn" not in mn:
                self.rd = allr(0)
            else:
                self.wr = R(0); self.rd = allr(1)
        elif mn.startswith(("buffer_", "global_")):
            self.kind = "vmem"
            if re.search(r'\blds\b', rest) or "load_lds" in mn:
                self.lds_dma = True
                self.rd = allr(0) + [("m0", 0)]
            elif "store" in mn:
                self.rd = allr(0)
                self.wide = ("x3" in mn or "x4" in mn)
            elif "atomic" in mn:
                self.rd = allr(0)
                if re.search(r'\bsc0\b', rest):
                    self.wr = R(0)
            else:
                self.wr = R(0); self.rd = allr(1)
        elif mn.startswith(("s_load", "s_buffer_load", "s_memtime", "s_memrealtime")):
            self.kind = "smem"
            self.wr = R(0); self.rd = allr(1)
        elif mn == "s_nop":
            self.kind = "nop"; self.nstates = int(ops[0], 0) + 1
        elif mn in ("s_waitcnt", "s_barrier", "s_setprio", "s_endpgm", "s_sleep") or mn.startswith(("s_branch", "s_cbranch")):
            self.kind = "ctl"
            if mn.startswith("s_cbranch_scc"): self.rd = [("scc", 0)]
            if mn.startswith("s_cbranch_vcc"): self.rd = [("vcc", 0)]
            if mn.startswith("s_cbranch_exec"): self.rd = [("exec", 0)]
        elif mn.startswith("s_"):
            self.kind = "salu"
            if mn.startswith("s_cmp"):
                self.rd = allr(0); self.wr = [("scc", 0)]
            else:
                self.wr = R(0); self.rd = allr(1)
                if "saveexec" in mn: self.wr = self.wr + [("exec", 0)]
        else:
            raise ValueError("unknown instruction " + text)
        self.rd = set(self.rd); self.wr = set(self.wr); self.srcc = set(self.srcc); self.srcab = set(self.srcab)

    def is_valu(self):
        return self.kind in ("valu", "trans", "permlane", "readlane")

def isv(r): return r[0] in ("v", "a")

def need_states(p, c):
    n = 0
    pv = p.is_valu()
    cv = c.is_valu()
    if pv:
        wv = {r for r in p.wr if isv(r)}
        ws = {r for r in p.wr if r[0] in ("s", "vcc")}
        if c.kind == "mfma" and wv & c.rd: n = max(n, 2)
        if c.dpp and wv & c.rd: n = max(n, 2)
        if c.kind == "permlane" and wv & c.rd: n = max(n, 2)
        if c.kind == "readlane" and wv & c.rd: n = max(n, 1)
        if p.kind == "trans" and cv and c.kind != "trans" and wv & c.rd: n = max(n, 1)
        if p.kind == "trans" and c.kind in ("vmem", "lds", "mfma") and wv & c.rd: n = max(n, 2)
        if ("sdwa" in p.mn or "op_sel" in p.text) and cv and wv & (c.rd | c.wr): n = max(n, 1)
        if ws:
            if c.kind == "vmem" and ws & c.rd: n = max(n, 5)
            if cv and ws & c.rd: n = max(n, 4 if c.kind == "readlane" else 2)
            if c.kind in ("salu", "ctl", "smem") and ws & c.rd: n = max(n, 4)
        if ("exec", 0) in p.wr:
            if cv or c.kind == "mfma": n = max(n, 5)
    if p.kind == "mfma":
        big = p.passes == 8
        if c.kind == "mfma":
            if p.wr & c.srcc:
                if not (p.wr == c.srcc and p.passes == c.passes): n = max(n, 10 if big else 6)
            if p.wr & c.srcab: n = max(n, 12 if big else 8)
            if p.wr & c.wr and not (p.wr == c.srcc and p.passes == c.passes):
                n = max(n, 10 if big else 6)
        elif cv:
            if p.wr & (c.rd | c.wr): n = max(n, 12 if big else 8)
            if p.srcc & c.wr: n = max(n, 7 if big else 3)
        elif c.kind in ("vmem", "lds"):
            if p.wr & (c.rd | c.wr): n = max(n, 12 if big else 8)
            if p.srcc & c.wr: n = max(n, 7 if big else 3)
    if p.kind == "salu":
        if ("m0", 0) in p.wr and c.lds_dma: n = max(n, 1)
    if p.kind == "vmem" and p.wide:
        data = {r for r in p.rd if isv(r)}
        if data & c.wr: n = max(n, 2)
    if p.kind == "lds" and p.mn.startswith("ds_write") and ("b128" in p.mn or "b96" in p.mn):
        data = {r for r in p.rd if isv(r)}
        if data & c.wr: n = max(n, 2)
    return n

class Asm:
    def __init__(self):
        self.out = []
        self.vm = []
        self.lg = []
        self.nid = 0
        self.hist = []

    def _push(self, ins):
        self.out.append(ins)
        self.hist.append(ins)
        if len(self.hist) > 24: self.hist.pop(0)

    def raw(self, text):
        self.out.append(text)

    def label(self, name):
        self.out.append(name + ":")

    def fence(self, nops=True):
        self.waitcnt(vm=0, lgkm=0)
        if nops:
            self._push(Inst("s_nop 15"))

    def waitcnt(self, vm=None, lgkm=None):
        parts = []
        if vm is not None:
            vm = min(vm, 63)
            if len(self.vm) > vm:
                self.vm = self.vm[len(self.vm) - vm:] if vm else []
            parts.append(f"vmcnt({vm})")
        if lgkm is not None:
            lgkm = min(lgkm, 15)
            if len(self.lg) > lgkm:
                self.lg = self.lg[len(self.lg) - lgkm:] if lgkm else []
            parts.append(f"lgkmcnt({lgkm})")
        self._push(Inst("s_waitcnt " + " ".join(parts)))

    def wait_vm(self, tok):
        ids = [i for i, _ in self.vm]
        if tok in ids:
            self.waitcnt(vm=len(ids) - 1 - ids.index(tok))

    def wait_lds_all(self):
        if self.lg: self.waitcnt(lgkm=0)

    def __call__(self, text):
        for line in text.strip().split("\n"):
            line = line.strip()
            if not line or line.startswith(";"): continue
            if line.endswith(":"):
                self.out.append(line); continue
            if line.startswith("."):
                self.out.append(line); continue
            self.emit(line)
        return self.nid - 1

    def emit(self, text):
        ins = Inst(text)
        touched = ins.rd | ins.wr
        nvm = None
        for idx, (i, wr) in enumerate(self.vm):
            if wr & (ins.rd if ";nowaw" in text else touched): nvm = len(self.vm) - 1 - idx
        nlg = None
        anysm = any(s for _, _, s in self.lg)
        tl = ins.rd if ";nowaw" in text else touched
        for idx, (i, wr, s) in enumerate(self.lg):
            if wr & tl: nlg = 0 if anysm else len(self.lg) - 1 - idx
        if ins.kind == "lds" and len(self.lg) >= 15:
            nlg = min(nlg, 14) if nlg is not None else (0 if anysm else 14)
        if nvm is not None or nlg is not None:
            self.waitcnt(vm=nvm, lgkm=nlg)
        if ins.mn == "s_waitcnt":
            m = re.search(r'vmcnt\((\d+)\)', text); vm = int(m.group(1)) if m else None
            m = re.search(r'lgkmcnt\((\d+)\)', text); lg = int(m.group(1)) if m else None
            self.waitcnt(vm=vm, lgkm=lg)
            return
        dist = 0; need = 0
        for p in reversed(self.hist):
            n = need_states(p, ins) - dist
            need = max(need, n)
            dist += p.nstates
            if dist > 20: break
        while need > 0:
            k = min(need, 16)
            self._push(Inst(f"s_nop {k-1}"))
            need -= k
        self._push(ins)
        if ins.kind == "vmem":
            self.vm.append((self.nid, ins.wr)); self.nid += 1
            assert len(self.vm) <= 63, "too many vmem ops outstanding"
        elif ins.kind == "lds":
            self.lg.append((self.nid, ins.wr, False)); self.nid += 1
        elif ins.kind == "smem":
            self.lg.append((self.nid, ins.wr, True)); self.nid += 1
        return self.nid - 1

    def mark(self):
        return len(self.out)

    def text(self, a=0, b=None):
        return "\n".join((("    " + x.text) if isinstance(x, Inst) else x) for x in self.out[a:b]) + "\n"

    def roll(self, body, n, counter, name, setup_done=False):
        segs = []
        start = self.mark()
        for it in range(n):
            a = self.mark()
            body(it)
            segs.append(self.out[a:self.mark()])
        txt = ["\n".join(x.text if isinstance(x, Inst) else x for x in s) for s in segs]
        best = (0, 0); i = 0
        while i < n:
            j = i
            while j + 1 < n and txt[j + 1] == txt[i]: j += 1
            if j - i > best[1] - best[0]: best = (i, j)
            i = j + 1
        i0, i1 = best
        new = []
        for it in range(i0): new += segs[it]
        cnt = i1 - i0 + 1
        if cnt >= 2:
            new.append(Inst(f"s_mov_b32 {counter}, {cnt}"))
            new.append(".p2align 6")
            new.append(name + ":")
            new += segs[i0]
            new.append(Inst(f"s_sub_u32 {counter}, {counter}, 1"))
            new.append(Inst(f"s_cmp_lg_u32 {counter}, 0"))
            new.append(Inst(f"s_cbranch_scc1 {name}"))
        else:
            new += segs[i0]
        for it in range(i1 + 1, n): new += segs[it]
        self.out[start:] = new
        return (i0, i1)

def interleave(main, fill, ratio=None):
    out = []
    n, m = len(main), len(fill)
    k = 0
    for i, x in enumerate(main):
        out.append(x)
        tgt = (i + 1) * m // n
        while k < tgt:
            out.append(fill[k]); k += 1
    out += fill[k:]
    return out


import os
STAMPS = os.environ.get("STAMPS", "") != ""
def stamp(a, idx, real=False):
    if not STAMPS: return
    if os.environ.get("REAL"): real = True
    a(f"{'s_memrealtime' if real else 's_memtime'} s[94:95]")
    a("s_waitcnt lgkmcnt(0)")
    a(f"s_mov_b32 s{80+idx}, s94")
def stamp_init(a):
    if not STAMPS: return
    for i in range(14): a(f"s_mov_b32 s{80+i}, 0")
def stamp_flush(a, kern, wsptr, wave_sgpr, vtmp):
    if not STAMPS: return
    from layout import WS_STAMP
    a(f"""
    s_mov_b64 exec, -1
    s_add_u32 s96, s{wsptr}, {WS_STAMP + kern * 512 * 8 * 64}
    s_addc_u32 s97, s{wsptr+1}, 0
    s_mov_b32 s98, {512 * 8 * 64}
    s_mov_b32 s99, 0x00020000
    s_lshl_b32 s79, s2, 3
    s_add_u32 s79, s79, s{wave_sgpr}
    s_lshl_b32 s79, s79, 6
    v_mov_b32 v{vtmp}, 0
    """)
    for i in range(14):
        a(f"v_mov_b32 v{vtmp+1}, s{80+i}")
        a(f"buffer_store_dword v{vtmp+1}, v{vtmp}, s[96:99], s79 offen offset:{4*i}")
    a("s_waitcnt vmcnt(0)")
```

```python
from asmlib import *
from layout import *
import os
EXP = os.environ.get('K2EXP', '')

def srd(a, d, ptr, off, nbytes):
    a(f"""
    s_add_u32 s{d}, s{ptr}, {off}
    s_addc_u32 s{d+1}, s{ptr+1}, 0
    s_mov_b32 s{d+2}, {nbytes}
    s_mov_b32 s{d+3}, 0x00020000
    """)

def vpi(a, d, s, t):
    a(f"""
    v_and_b32 v{d}, 0x33, v{s}
    v_and_b32 v{t}, 4, v{s}
    v_lshl_or_b32 v{d}, v{t}, 1, v{d}
    v_and_b32 v{t}, 8, v{s}
    v_lshrrev_b32 v{t}, 1, v{t}
    v_or_b32 v{d}, v{d}, v{t}
    """)

FUSE = 'nofuse' not in EXP
SC = (' sc1' if 'st1' in EXP else ' sc0 sc1') if FUSE else ''
NT_ = ' nt' if 'snt' in EXP else ''
LSC = '' if 'ldplain' in EXP else (' sc1' if 'ld1' in EXP else ' sc0 sc1')
M32 = "v_mfma_f32_32x32x16_bf16"
M16 = "v_mfma_f32_16x16x32_bf16"
def R(b, n): return f"v[{b}:{b+n-1}]"

CH_T = 8
CH_B = CH_T * KV_TILE
def gen_attn(a, name):
    QA = [16, 20]; QB = [24, 28]; KA = [32, 36]; KB = [40, 44]; V = [48, 56]; S = [64, 80]; P = [96, 104]; O = [112, 128]
    vKA, vKB, vV, vD = 1, 2, 3, 4
    a("s_setprio 3")
    a(f"""
    s_lshl_b32 s24, s3, 2
    s_lshr_b32 s25, s4, 3
    s_add_u32 s24, s24, s25
    s_and_b32 s25, s4, 7
    """)
    srd(a, 16, 14, WS_KV, KV_BYTES)
    srd(a, 20, 14, WS_QA, WS_GATE - WS_QA)
    srd(a, 40, 14, WS_AF, AF_BYTES)
    a(f"""
    s_mul_i32 s26, s24, {64*KV_TILE}
    s_mul_i32 s27, s6, 5120
    s_add_u32 s26, s26, s27
    v_lshlrev_b32 v{vD}, 4, v0
    s_mov_b32 s28, s27
    """)
    toks = {}
    def dma(c):
        L = []
        L.append("s_mov_b32 m0, s28")
        for j in range(4):
            L.append(f"buffer_load_dwordx4 v{vD}, s[16:19], s26 offen offset:{j*1024} lds")
        L.append("s_add_u32 m0, s28, 4096")
        L.append("s_add_u32 s29, s26, 4096")
        L.append(f"buffer_load_dwordx4 v{vD}, s[16:19], s29 offen lds")
        L.append(f"s_add_u32 s26, s26, {CH_B}")
        L.append(f"s_add_u32 s28, s28, {CH_B}")
        L.append(f"s_sub_u32 s29, s28, {3*CH_B}")
        L.append(f"s_cmp_ge_u32 s28, {3*CH_B}")
        L.append("s_cselect_b32 s28, s29, s28")
        return L
    def run_dma(c):
        for x in dma(c):
            t = a(x)
            if "buffer_load" in x: toks[c] = t
    run_dma(0)
    a(f"""
    s_lshl_b32 s30, s25, 3
    s_lshl_b32 s31, s6, 1
    s_add_u32 s30, s30, s31
    s_lshl_b32 s31, s24, 6
    s_add_u32 s31, s31, s30
    s_lshl_b32 s32, s31, 10
    s_lshl_b32 s33, s31, 7
    s_add_u32 s33, s33, {WS_QB - WS_QA}
    v_and_b32 v5, 31, v0
    v_lshlrev_b32 v6, 2, v5
    v_lshrrev_b32 v7, 5, v0
    v_lshl_add_u32 v8, v7, 30, v6
    """)
    for qt in range(2):
        a(f"buffer_load_dwordx4 {R(QA[qt],4)}, v{vD}, s[20:23], s32 offen offset:{qt*1024}")
        a(f"buffer_load_dword v{QB[qt]}, v8, s[20:23], s33 offen offset:{qt*128}")
    if FUSE:
        srd(a, 44, 14, WS_GATE, 8192)
        a("s_lshl_b32 s33, s30, 7")
        for qt in range(2): a(f"buffer_load_dword v{14+qt}, v6, s[44:47], s33 offen offset:{qt*128}")
    for qt in range(2):
        for r in range(1, 4): a(f"v_mov_b32 v{QB[qt]+r}, 0")
        a(f"v_mov_b32 v{KB[qt]+1}, 0x3f803f80")
        a(f"v_mov_b32 v{KB[qt]+2}, 0")
        a(f"v_mov_b32 v{KB[qt]+3}, 0")
        for r in range(16): a(f"v_mov_b32 v{O[qt]+r}, 0")
    a(f"v_mov_b32 v{vKA}, v{vD}")
    a(f"v_add_u32 v{vKB}, {KV_KB}, v6")
    vpi(a, 9, 5, 10)
    a(f"""
    v_cmp_lt_u32 vcc, 18, v5
    v_mov_b32 v11, 19
    v_cndmask_b32 v9, v9, v11, vcc
    v_mul_u32_u24 v10, {KV_VR}, v7
    v_lshl_add_u32 v{vV}, v9, 4, v10
    v_add_u32 v{vV}, {KV_V}, v{vV}
    """)
    a(f"s_mov_b32 s34, 0\ns_mov_b32 s35, 0\ns_mov_b32 s36, {CH_B}")
    def rdK(kt):
        o = (kt % CH_T) * KV_TILE
        return [f"ds_read_b128 {R(KA[kt%2],4)}, v{vKA} offset:{o}", f"ds_read_b32 v{KB[kt%2]}, v{vKB} offset:{o}"]
    def rdV(kt):
        o = (kt % CH_T) * KV_TILE
        return [f"ds_read_b128 {R(V[kt%2],4)}, v{vV} offset:{o}", f"ds_read_b128 {R(V[kt%2]+4,4)}, v{vV} offset:{o+2*KV_VR}"]
    def advK():
        return ["s_add_u32 s34, s34, 1", "s_cmp_eq_u32 s34, 3", f"s_cselect_b32 s37, {-2*CH_B}, s36", "s_cselect_b32 s34, 0, s34",
                f"v_add_u32 v{vKA}, s37, v{vKA}", f"v_add_u32 v{vKB}, s37, v{vKB}"]
    def advV():
        return ["s_add_u32 s35, s35, 1", "s_cmp_eq_u32 s35, 3", f"s_cselect_b32 s37, {-2*CH_B}, s36", "s_cselect_b32 s35, 0, s35",
                f"v_add_u32 v{vV}, s37, v{vV}"]
    def qk(n):
        kt, qt = n // 2, n % 2
        return [f"{M32} {R(S[n%2],16)}, {R(KA[kt%2],4)}, {R(QA[qt],4)}, 0",
                f"{M32} {R(S[n%2],16)}, {R(KB[kt%2],4)}, {R(QB[qt],4)}, {R(S[n%2],16)}"]
    def pv(n):
        kt, qt = n // 2, n % 2
        return [f"{M32} {R(O[qt],16)}, {R(V[kt%2],4)}, {R(P[n%2],4)}, {R(O[qt],16)}",
                f"{M32} {R(O[qt],16)}, {R(V[kt%2]+4,4)}, {R(P[n%2]+4,4)}, {R(O[qt],16)}"]
    def sm(n):
        s, p = S[n % 2], P[n % 2]
        L = []
        for i in range(8):
            L.append(f"v_exp_f32 v{s+2*i}, v{s+2*i}")
            L.append(f"v_exp_f32 v{s+2*i+1}, v{s+2*i+1}")
            if i > 0: L.append(f"v_cvt_pk_bf16_f32 v{p+i-1}, v{s+2*i-2}, v{s+2*i-1}")
        L.append(f"v_cvt_pk_bf16_f32 v{p+7}, v{s+14}, v{s+15}")
        return L
    a.wait_vm(toks[0])
    a("s_barrier")
    stamp(a, 2)
    a("s_setprio 1" if 'ahigh' in EXP else "s_setprio 0")
    for x in rdK(0): a(x)
    run_dma(1)
    if FUSE:
        srd(a, 48, 68, 0, 2304 * 1152)
        srd(a, 52, 66, 0, 576 * 1152)
        a(f"""
        s_and_b32 s56, s2, 255
        s_lshl_b32 s56, s56, 2
        s_add_u32 s56, s56, s6
        s_mul_i32 s57, s56, 2592
        s_mul_i32 s58, s56, 648
        s_and_b32 s57, s57, 0xfffffff0
        s_and_b32 s58, s58, 0xfffffff0
        """)
        for j in range(3): a(f"buffer_load_dwordx4 {R(144+4*j,4)}, v{vD}, s[48:51], s57 offen offset:{j*1024}")
        a(f"buffer_load_dwordx4 {R(156,4)}, v{vD}, s[52:55], s58 offen")
        PFC = int(os.environ.get("PFC", "5"))
        a(f"""
        s_lshl_b32 s59, s4, 2
        s_add_u32 s59, s59, s6
        s_lshl_b32 s59, s59, 10
        s_sub_u32 s59, s59, {PFC*7*128*1024}
        """)
    for x in qk(0) + qk(1): a(x)
    for qt in range(2):
        s = S[qt]
        a(f"v_max3_f32 v10, v{s}, v{s+1}, v{s+2}")
        for i in range(3, 15, 2): a(f"v_max3_f32 v10, v{s+i}, v{s+i+1}, v10")
        a(f"v_max_f32 v10, v{s+15}, v10")
        a(f"""
        v_mov_b32 v11, v10
        v_permlane32_swap_b32 v10, v11
        v_max_f32 v10, v10, v11
        v_sub_f32 v10, 0, v10
        v_and_b32 v11, 0xffff0000, v10
        v_sub_f32 v12, v10, v11
        v_cvt_pk_bf16_f32 v12, v11, v12
        v_cmp_gt_u32 vcc, 32, v0
        v_mov_b32 v11, 0
        v_cndmask_b32 v{QB[qt]+1}, v11, v12, vcc
        """)
    for x in qk(0): a(x)
    NT = 128
    def slot(n):
        kt = n // 2
        pre = []
        fill = []
        if n % 2 == 0:
            if kt % CH_T == CH_T - 1 and kt + 1 < 64:
                c = kt // CH_T + 1
                a.wait_vm(toks[c])
                a("s_barrier")
                pre += advK()
                if c + 1 < 8: fill = ("dma", c + 1)
            if kt + 1 < 64: pre += rdK(kt + 1)
            pre += rdV(kt)
        LAG = int(os.environ.get("LAG", "2"))
        s_, p_ = S[n % 2], P[n % 2]; s1, p1 = S[(n - 1) % 2], P[(n - 1) % 2]
        q_ = qk(n + 1) if n + 1 < NT else [None, None]
        v_ = pv(n - 1) if n > 0 else [None, None]
        at = {0: v_[0], 2 * LAG: q_[0], 2 * LAG + 4: q_[1], 12 if LAG <= 2 else 14: v_[1]}
        seq = []
        extra = list(pre)
        dm = dma(fill[1]) if fill else []
        for e in range(16):
            if at.get(e): seq.append(at[e])
            seq.append(f"v_exp_f32 v{s_+e}, v{s_+e}")
            if e % 2 == 1:
                i = e // 2 - LAG
                if i >= 0: seq.append(f"v_cvt_pk_bf16_f32 v{p_+i}, v{s_+2*i}, v{s_+2*i+1}")
                elif n > 0: seq.append(f"v_cvt_pk_bf16_f32 v{p1+8+i}, v{s1+2*(8+i)}, v{s1+2*(8+i)+1}")
            if extra: seq.append(extra.pop(0))
            elif dm: seq.append(dm.pop(0))
        seq += extra + dm
        if 'wpf' in EXP and n % 16 in (1, 3, 5, 7, 9, 11, 13):
            seq.insert(10, f"buffer_load_dwordx4 {R(144+4*((n%16)//2),4)}, v{vD}, s[48:51], s59 offen ;nowaw")
            seq.insert(11, f"s_add_u32 s59, s59, {128*1024}")
        if n == NT - 1:
            for i in range(8 - LAG, 8): seq.append(f"v_cvt_pk_bf16_f32 v{p_+i}, v{s_+2*i}, v{s_+2*i+1}")
        if n % 2 == 0 and kt % CH_T == CH_T - 1: seq += advV()
        for x in seq:
            t = a(x)
            if x.endswith(" lds"): toks[fill[1]] = t
    def body(c):
        for n in range(16 * c, 16 * c + 16): slot(n)
    a.roll(body, 8, "s38", name + "_al")
    for x in pv(NT - 1): a(x)
    stamp(a, 3)
    a("s_setprio 3")
    a("v_mov_b32 v10, 0")
    for qt in range(2):
        a(f"v_mul_f32 v11, 0x4d800000, v{O[qt]+10}")
        a("v_fma_f32 v10, v11, 0, v10")
        for r in range(10): a(f"v_fma_f32 v10, v{O[qt]+r}, 0, v10")
    a("v_cmp_u_f32 vcc, v10, v10")
    if 'forcefb' in EXP: a(f"s_branch {name}_fb")
    a(f"s_cbranch_vccnz {name}_fb")
    a.label(name + "_fin")
    a.fence()
    a(f"""
    s_mul_i32 s32, s30, {360*512}
    s_lshl_b32 s33, s24, 10
    s_add_u32 s33, s33, s32
    s_lshr_b32 s34, s24, 2
    s_lshl_b32 s34, s34, 9
    s_add_u32 s34, s34, {64*512}
    s_add_u32 s34, s34, s32
    s_and_b32 s35, s24, 3
    s_lshl_b32 s35, s35, 2
    s_add_u32 s34, s34, s35
    v_lshlrev_b32 v9, 4, v5
    v_lshl_add_u32 v9, v7, 30, v9
    """)
    for qt in range(2):
        o = O[qt]
        a(f"""
        v_mov_b32 v10, v{o+10}
        v_mov_b32 v11, v{o+10}
        v_permlane32_swap_b32 v10, v11
        v_rcp_f32 v10, v10
        """)
        if FUSE: a(f"v_mul_f32 v10, v{14+qt}, v10")
        for r in range(10): a(f"v_mul_f32 v{o+r}, v10, v{o+r}")
        for r in range(5): a(f"v_cvt_pk_bf16_f32 v{P[qt]+r}, v{o+2*r}, v{o+2*r+1}")
        a(f"buffer_store_dwordx4 {R(P[qt],4)}, v{vD}, s[40:43], s33 offen{SC}")
        a(f"buffer_store_dword v{P[qt]+4}, v9, s[40:43], s34 offen{SC}")
        if qt == 0:
            a(f"s_add_u32 s33, s33, {360*512}\ns_add_u32 s34, s34, {360*512}")
    if FUSE:
        srd(a, 44, 14, WS_FLAG, 65536)
        a(f"""
        s_waitcnt vmcnt(0)
        s_barrier
        s_lshl_b32 s32, s25, 5
        s_add_u32 s32, s32, s24
        s_lshl_b32 s32, s32, 7
        s_add_u32 s32, s32, 32768
        s_lshl_b32 s33, s6, 6
        v_add_lshl_u32 v9, v0, s33, 16
        v_mov_b32 v10, 1
        buffer_store_dword v10, v9, s[44:47], s32 offen{SC}
        """)
        if 'l2pf' in EXP:
            stamp(a, 6)
            a(f"""
            s_lshl_b32 s56, s4, 2
            s_add_u32 s56, s56, s6
            s_lshl_b32 s57, s56, 10
            """)
            for j in range(6):
                a(f"buffer_load_dwordx4 {R(144+4*(j%8),4)}, v{vD}, s[52:55], s57 offen ;nowaw")
                a(f"s_add_u32 s57, s57, {128*1024}")
            a("s_lshl_b32 s57, s56, 10")
            for j in range(21):
                a(f"buffer_load_dwordx4 {R(144+4*(j%8),4)}, v{vD}, s[48:51], s57 offen ;nowaw")
                a(f"s_add_u32 s57, s57, {128*1024}")
    if STAMPS: a("s_waitcnt vmcnt(0)")
    stamp(a, 4); stamp(a, 5, True); stamp_flush(a, 1, 14, 6, 0)
    a("s_endpgm")
    a.label(name + "_fb")
    a.fence()
    MX = [12, 13]
    a(f"""
    s_mul_i32 s26, s24, {64*KV_TILE}
    v_add_u32 v{vKB}, {KV_KB}, v6
    v_mul_u32_u24 v10, {KV_VR}, v7
    v_lshl_add_u32 v{vV}, v9, 4, v10
    v_add_u32 v{vV}, {KV_V}, v{vV}
    v_mov_b32 v{QB[0]+1}, 0
    v_mov_b32 v{QB[1]+1}, 0
    v_mov_b32 v12, 0xff800000
    v_mov_b32 v13, 0xff800000
    s_mov_b32 s29, s26
    s_mov_b32 s38, 64
    """)
    a.label(name + "_fb1")
    a(f"buffer_load_dwordx4 {R(KA[0],4)}, v{vD}, s[16:19], s29 offen")
    a(f"buffer_load_dword v{KB[0]}, v{vKB}, s[16:19], s29 offen")
    for x in qk(0) + qk(1): a(x)
    for qt in range(2):
        for i in range(0, 16, 2): a(f"v_max3_f32 v{MX[qt]}, v{S[qt]+i}, v{S[qt]+i+1}, v{MX[qt]}")
    a(f"s_add_u32 s29, s29, {KV_TILE}\ns_sub_u32 s38, s38, 1\ns_cmp_lg_u32 s38, 0")
    a.fence()
    a(f"s_cbranch_scc1 {name}_fb1")
    for qt in range(2):
        a(f"v_mov_b32 v11, v{MX[qt]}\nv_permlane32_swap_b32 v{MX[qt]}, v11\nv_max_f32 v{MX[qt]}, v{MX[qt]}, v11")
        for r in range(16): a(f"v_mov_b32 v{O[qt]+r}, 0")
    a("s_mov_b32 s29, s26\ns_mov_b32 s38, 64")
    a.fence()
    a.label(name + "_fb2")
    a(f"buffer_load_dwordx4 {R(KA[0],4)}, v{vD}, s[16:19], s29 offen")
    a(f"buffer_load_dword v{KB[0]}, v{vKB}, s[16:19], s29 offen")
    a(f"buffer_load_dwordx4 {R(V[0],4)}, v{vV}, s[16:19], s29 offen")
    a(f"buffer_load_dwordx4 {R(V[0]+4,4)}, v{vV}, s[16:19], s29 offen offset:{2*KV_VR}")
    for x in qk(0) + qk(1): a(x)
    for qt in range(2):
        for r in range(16): a(f"v_sub_f32 v{S[qt]+r}, v{S[qt]+r}, v{MX[qt]}")
        for x in sm(qt): a(x)
        for x in pv(qt): a(x)
    a(f"s_add_u32 s29, s29, {KV_TILE}\ns_sub_u32 s38, s38, 1\ns_cmp_lg_u32 s38, 0")
    a.fence()
    a(f"s_cbranch_scc1 {name}_fb2")
    a(f"s_branch {name}_fin")

GSL = 18432
def gen_spat(a, name):
    ACC = 16
    ACX = 80
    ZR = 88
    B32 = 152
    B16 = 184
    A16 = 200
    vB32, vB16, vZX = 208, 216, 220
    vDZ, vDX, vDW = 222, 223, 224
    Z1 = ZR
    a("s_setprio 2")
    a(f"""
    s_lshr_b32 s24, s3, 2
    s_lshl_b32 s24, s24, 3
    s_lshr_b32 s25, s4, 2
    s_add_u32 s24, s24, s25
    s_and_b32 s25, s3, 3
    s_lshl_b32 s25, s25, 2
    s_and_b32 s26, s4, 3
    s_add_u32 s25, s25, s26
    """)
    srd(a, 20, 8, 0, 2048 * 4096)
    a(f"""
    s_lshl_b32 s26, s24, 7
    s_lshl_b32 s27, s6, 5
    s_add_u32 s26, s26, s27
    v_lshrrev_b32 v4, 3, v0
    v_and_b32 v5, 7, v0
    s_lshl_b32 s55, s6, 12
    s_mov_b32 s57, 0
    """)
    for j in range(4):
        a(f"""
        v_add_u32 v6, {8*j}, v4
        v_bfe_u32 v7, v6, 1, 3
        v_xor_b32 v7, v7, v5
        v_add_u32 v6, s26, v6
        v_lshlrev_b32 v6, 12, v6
        v_lshl_add_u32 v6, v7, 4, v6
        v_subrev_u32 v{vDW+j}, {1024*j}, v6
        """)
    srd(a, 16, 14, WS_Z2, Z_BYTES)
    a(f"""
    s_lshl_b32 s26, s25, 2
    s_add_u32 s26, s26, s6
    s_lshl_b32 s26, s26, 17
    v_lshlrev_b32 v1, 4, v0
    v_add_u32 v{vDZ}, s26, v1
    s_lshr_b32 s26, s25, 1
    s_add_u32 s26, s26, 64
    s_lshl_b32 s26, s26, 17
    s_and_b32 s27, s25, 1
    s_lshl_b32 s27, s27, 8
    s_add_u32 s26, s26, s27
    s_lshl_b32 s27, s6, 10
    s_add_u32 s26, s26, s27
    v_lshrrev_b32 v2, 4, v0
    v_and_b32 v3, 15, v0
    v_lshlrev_b32 v4, 9, v2
    v_lshl_add_u32 v4, v3, 4, v4
    v_add_u32 v{vDX}, s26, v4
    s_lshl_b32 s54, s6, 9
    s_add_u32 s54, s54, 16384
    s_mov_b32 s56, 0
    s_mov_b64 s[52:53], 0xffffffff
    """)
    tw = {}
    def loads(J):
        sl = (J % 4) * GSL
        L = [f"s_add_u32 m0, s55, {sl}"]
        L += [f"buffer_load_dwordx4 v{vDW+j}, s[20:23], s57 offen offset:{1024*j}{NT_} lds" for j in range(4)]
        L += [f"s_add_u32 m0, s54, {sl}", "s_mov_b64 exec, s[52:53]",
              f"buffer_load_dwordx4 v{vDX}, s[16:19], s56 offen lds", "s_mov_b64 exec, -1"]
        L += [f"buffer_load_dwordx4 {R(ZR+(J%4)*16+4*u,4)}, v{vDZ}, s[16:19], s56 offen offset:{1024*u}{NT_}" for u in range(4)]
        L += ["s_add_u32 s57, s57, 128", "s_add_u32 s56, s56, 4096"]
        return L
    def run(L, k):
        for x in L:
            t = a(x)
            if x.endswith(" lds"): tw[k] = t
    for J in range(3): run(loads(J), J)
    srd(a, 40, 14, WS_AF, AF_BYTES)
    srd(a, 44, 14, WS_Z1, Z_BYTES)
    srd(a, 48, 10, 0, 4096)
    srd(a, 60, 14, WS_GATE, 8192)
    vpi(a, 6, 3, 7)
    a(f"""
    v_lshlrev_b32 v7, 8, v2
    v_lshl_add_u32 v7, v6, 4, v7
    v_add_u32 v{vZX}, 16384, v7
    v_and_b32 v6, 31, v0
    v_lshrrev_b32 v7, 5, v0
    v_bfe_u32 v8, v6, 1, 3
    v_xor_b32 v8, v8, v7
    v_lshlrev_b32 v8, 4, v8
    v_lshl_add_u32 v{vB32}, v6, 7, v8
    v_xor_b32 v{vB32+1}, 32, v{vB32}
    v_xor_b32 v{vB32+2}, 64, v{vB32}
    v_xor_b32 v{vB32+3}, 96, v{vB32}
    v_bfe_u32 v8, v3, 1, 3
    v_xor_b32 v8, v8, v2
    v_lshlrev_b32 v8, 4, v8
    v_lshl_add_u32 v8, v3, 7, v8
    v_add_u32 v{vB16}, s55, v8
    v_xor_b32 v{vB16+1}, 64, v{vB16}
    """)
    for i in range(4): a(f"v_add_u32 v{vB32+4+i}, {2*GSL}, v{vB32+i}")
    for i in range(2): a(f"v_add_u32 v{vB16+2+i}, {2*GSL}, v{vB16+i}")
    a(f"v_add_u32 v{vZX+1}, {2*GSL}, v{vZX}")
    for r in range(72): a(f"v_mov_b32 v{ACC+r}, 0")
    NU = 128
    def reads(U):
        J, u = U // 4, U % 4
        hi = (J % 4) // 2; sl = (J % 2) * GSL
        L = [f"ds_read_b128 {R(B32+(U%2)*16+4*tl,4)}, v{vB32+4*hi+u} offset:{sl+tl*4096}" for tl in range(4)]
        if u % 2 == 0:
            v = u // 2
            L.append(f"ds_read_b128 {R(A16+4*v,4)}, v{vZX+hi} offset:{sl+v*1024}")
            L += [f"ds_read_b128 {R(B16+8*v+4*tl,4)}, v{vB16+2*hi+v} offset:{sl+tl*2048}" for tl in range(2)]
        return L
    def mfmas(U):
        J, u = U // 4, U % 4
        L = [f"{M32} {R(ACC+16*tl,16)}, {R(ZR+(J%4)*16+4*u,4)}, {R(B32+(U%2)*16+4*tl,4)}, {R(ACC+16*tl,16)}" for tl in range(4)]
        v, tl = u // 2, u % 2
        L.append(f"{M16} {R(ACX+4*tl,4)}, {R(A16+4*v,4)}, {R(B16+8*v+4*tl,4)}, {R(ACX+4*tl,4)}")
        return L
    def z1_loads():
        L = ["s_lshl_b32 s26, s24, 2",
             "s_lshl_b32 s27, s25, 2", "s_add_u32 s27, s27, s6",
             "s_mul_i32 s28, s26, 72", "s_add_u32 s28, s28, s27", "s_lshl_b32 s28, s28, 11"]
        for tl in range(4):
            for j in range(2):
                L.append(f"buffer_load_dwordx4 {R(Z1+(tl*2+j)*4,4)}, v1, s[44:47], s28 offen offset:{j*1024}")
            L.append(f"s_add_u32 s28, s28, {72*2048}")
        L += ["s_add_u32 s30, s26, s6", "s_mul_i32 s31, s30, 72", "s_add_u32 s31, s31, 64", "s_lshl_b32 s31, s31, 11",
              "s_lshl_b32 s32, s25, 10", "s_add_u32 s31, s31, s32",
              "v_lshrrev_b32 v9, 5, v0", "v_lshlrev_b32 v9, 9, v9", "v_lshl_add_u32 v9, v3, 4, v9", "v_and_b32 v10, 1, v2", "v_lshl_add_u32 v9, v10, 3, v9"]
        for tl in range(2):
            L.append(f"buffer_load_dwordx2 {R(Z1+32+2*tl,2)}, v9, s[44:47], s31 offen offset:{tl*256}")
        L += ["v_and_b32 v10, 31, v0", "v_lshlrev_b32 v10, 1, v10", "s_lshl_b32 s32, s26, 6", "v_lshlrev_b32 v11, 1, v3", "s_lshl_b32 s33, s30, 6"]
        for tl in range(4):
            L.append(f"buffer_load_ushort v{Z1+36+tl}, v10, s[48:51], s32 offen offset:{tl*64}")
        for tl in range(2):
            L.append(f"buffer_load_ushort v{Z1+40+tl}, v11, s[48:51], s33 offen offset:{tl*32}")
        if FUSE:
            L += ["v_lshlrev_b32 v10, 1, v10", "v_lshlrev_b32 v11, 1, v11", "s_lshl_b32 s32, s32, 1", "s_lshl_b32 s33, s33, 1"]
            for tl in range(4):
                L.append(f"buffer_load_dword v{Z1+42+tl}, v10, s[60:63], s32 offen offset:{tl*128}")
            for tl in range(2):
                L.append(f"buffer_load_dword v{228+tl}, v11, s[60:63], s33 offen offset:{tl*64}")
            L += [x.strip() for x in out_setup(a)]
        return L
    a.wait_vm(tw[0])
    a("s_barrier")
    stamp(a, 2)
    for x in reads(0): a(x)
    pend = []
    def step(U):
        J, u = U // 4, U % 4
        fill = []
        if u == 3 and J + 1 < 32:
            a.wait_vm(tw[J + 1])
            a.wait_lds_all()
            a("s_barrier")
        if U + 1 < NU: fill += reads(U + 1)
        if u == 0:
            pend[:] = loads(J + 3) if J + 3 < 32 else (z1_loads() if J == 31 else [])
            pend.append(None)
            step.key = J + 3
            step.n = len(pend)
        mf = mfmas(U)
        take = []
        if u < 3:
            want = step.n * (u + 1) // 3
            while step.n - len(pend) < want and pend:
                x = pend.pop(0)
                if x is not None: take.append(x)
            while take and pend and pend[0] is not None and (take[-1].startswith("s_mov_b64 exec, s") or pend[0].startswith("s_mov_b64 exec, -1") or take[-1].startswith("s_add_u32 m0")):
                take.append(pend.pop(0))
        fill += take
        seq = []
        n, m = len(mf), len(fill); k = 0
        for i, x in enumerate(mf):
            seq.append(x)
            tgt = (i + 1) * m // n
            while k < tgt or (0 < k < m and (fill[k-1].startswith("s_mov_b64 exec, s") or fill[k].startswith("s_mov_b64 exec, -1"))):
                seq.append(fill[k]); k += 1
        seq += fill[k:]
        for x in seq:
            t = a(x)
            if x.endswith(" lds"): tw[step.key] = t
    LOWIT = int(os.environ.get("LOWIT", "3"))
    a(f"s_mov_b32 s64, {LOWIT}")
    if LOWIT > 0: a("s_setprio 0")
    def body(it):
        for U in range(16 * it, 16 * it + 16): step(U)
        a(f"""
        s_sub_u32 s64, s64, 1
        s_cmp_lg_u32 s64, 0
        s_cbranch_scc1 1f
        s_setprio 2
        """)
        a.raw("1:")
    a.roll(body, 8, "s65", name + "_gl")
    a("s_setprio 2")
    stamp(a, 3)
    for i in range(6): a(f"v_lshlrev_b32 v{Z1+36+i}, 16, v{Z1+36+i}")
    a(f"""
    s_mul_i32 s34, s26, {360*512}
    s_lshl_b32 s35, s27, 11
    s_add_u32 s34, s34, s35
    s_add_u32 s34, s34, {72*512}
    s_mul_i32 s36, s30, {360*512}
    s_lshl_b32 s37, s25, 10
    s_add_u32 s36, s36, s37
    s_add_u32 s36, s36, {(72+256)*512}
    """)
    T = B32
    GT = [Z1 + 42 + i for i in range(4)] + [228, 229]
    if FUSE:
        for i in range(6):
            a(f"v_sub_f32 v{GT[i]}, 1.0, v{GT[i]}")
            a(f"v_mul_f32 v{Z1+36+i}, v{GT[i]}, v{Z1+36+i}")
    def fin(c, z, nb, bi, t):
        bias = Z1 + 36 + bi
        for p in range(nb):
            a(f"v_lshlrev_b32 v{t+8}, 16, v{z+p}")
            a(f"v_and_b32 v{t+9}, 0xffff0000, v{z+p}")
            for e in range(2):
                if FUSE: a(f"v_fma_f32 v{c+2*p+e}, v{c+2*p+e}, v{GT[bi]}, v{bias}")
                else: a(f"v_add_f32 v{c+2*p+e}, v{bias}, v{c+2*p+e}")
            for e in range(2): a(f"v_mul_f32 v{c+2*p+e}, v{c+2*p+e}, v{t+8+e}")
            a(f"v_cvt_pk_bf16_f32 v{t+p}, v{c+2*p}, v{c+2*p+1}")
    k = 0
    for tl in range(4):
        for j in range(2):
            t = T + (k % 4) * 12; k += 1
            fin(ACC + tl * 16 + 8 * j, Z1 + (tl * 2 + j) * 4, 4, tl, t)
            a(f"buffer_store_dwordx4 {R(t,4)}, v1, s[40:43], s34 offen offset:{j*1024}{SC}")
        a(f"s_add_u32 s34, s34, {360*512}")
    for tl in range(2):
        t = T + (k % 4) * 12; k += 1
        fin(ACX + 4 * tl, Z1 + 32 + 2 * tl, 2, 4 + tl, t)
        stok = a(f"buffer_store_dwordx2 {R(t,2)}, v9, s[40:43], s36 offen offset:{tl*256}{SC}")
    if FUSE:
        gen_out(a, name, stok)
        return
    if STAMPS: a("s_waitcnt vmcnt(0)")
    stamp(a, 4); stamp(a, 5, True); stamp_flush(a, 1, 14, 6, 0)
    a("s_endpgm")

def poll(a, lbl, voff, soff, vpre=None):
    if vpre is not None:
        a(f"v_cmp_ne_u32 vcc, 1, v{vpre}")
        a(f"s_cbranch_vccz {lbl}_ok")
    saved = list(a.vm)
    a("s_mov_b32 s38, 0x40000")
    a.label(lbl)
    a(f"""
    buffer_load_dword v12, v{voff}, s[72:75], {soff} offen sc0 sc1
    s_waitcnt vmcnt(0)
    v_cmp_ne_u32 vcc, 1, v12
    s_sub_u32 s38, s38, 1
    s_cbranch_vccz {lbl}_ok
    s_cmp_eq_u32 s38, 0
    s_cbranch_scc1 {lbl}_ok
    s_sleep 4
    s_branch {lbl}
    """)
    a.label(lbl + "_ok")
    if vpre is not None: a.vm = saved

vFU, vFO, vSO, vSU = 230, 231, 232, 233
def out_setup(a):
    return f"""
    s_add_u32 s72, s14, {WS_FLAG}
    s_addc_u32 s73, s15, 0
    s_mov_b32 s74, 65536
    s_mov_b32 s75, 0x00020000
    s_mul_i32 s76, s3, 30
    s_add_u32 s76, s76, s4
    s_min_u32 s76, s76, 233
    s_mul_i32 s77, s76, 7282
    s_lshr_b32 s77, s77, 16
    s_mul_i32 s78, s77, 9
    s_sub_u32 s78, s76, s78
    s_mul_i32 s58, s77, 80
    s_add_u32 s38, s58, 79
    s_min_u32 s38, s38, 2047
    s_lshr_b32 s59, s58, 7
    s_lshr_b32 s39, s38, 7
    s_sub_u32 s39, s39, s59
    s_lshl_b32 s59, s59, 11
    v_and_b32 v6, 1, v2
    v_mul_u32_u24 v6, s39, v6
    v_lshlrev_b32 v6, 11, v6
    v_lshl_add_u32 v{vFU}, v3, 7, v6
    s_lshr_b32 s29, s58, 8
    s_lshr_b32 s39, s38, 8
    s_sub_u32 s39, s39, s29
    s_lshl_b32 s29, s29, 12
    s_add_u32 s29, s29, 32768
    v_lshrrev_b32 v6, 5, v0
    v_mul_u32_u24 v6, s39, v6
    v_and_b32 v7, 31, v0
    v_lshlrev_b32 v6, 12, v6
    v_lshl_add_u32 v{vFO}, v7, 7, v6
    buffer_load_dword v{vSO}, v{vFO}, s[72:75], s29 offen sc0 sc1
    """.strip().split("\n")

def gen_out(a, name, store_tok):
    D = 4
    ACC = 16; AR = 96; WF = 176; vA = 208; vDW = 213; vTR = 220
    OFIRST = 'olast' not in EXP
    order = (["a"] * 4 + ["b"] + ["n"] * 18) if OFIRST else (["n"] * 18 + ["a"] * 4 + ["b"])
    NSUB = 23
    srd(a, 16, 68, 0, 2304 * 1152)
    srd(a, 20, 66, 0, 576 * 1152)
    srd(a, 48, 70, 0, 2048 * 1152)
    a(f"""
    s_movk_i32 s35, 1152
    s_lshl_b32 s37, s78, 7
    s_lshl_b32 s54, s6, 12
    v_lshrrev_b32 v4, 3, v0
    v_and_b32 v5, 7, v0
    v_and_b32 v6, 2, v4
    v_xor_b32 v5, v5, v6
    """)
    def wrows(mode):
        L = []
        for j in range(4):
            L += [f"v_add_u32 v6, {8*j + (2*(j//2) if mode == 'a' else 0)}, v4"]
            if mode == "b": L += ["v_lshrrev_b32 v7, 1, v6", "v_lshl_add_u32 v6, v7, 4, v6", "v_add_u32 v6, 16, v6"]
            L += ["v_mul_lo_u32 v6, v6, s35", f"v_xor_b32 v7, {(j&1)<<2}, v5", "v_lshl_add_u32 v6, v7, 4, v6", "v_add_u32 v6, s37, v6",
                  f"v_subrev_u32 v{vDW+j}, {1024*j}, v6"]
        rows = {"n": 32, "a": 36, "b": 288}[mode]
        L += [f"s_mul_i32 s57, s6, {rows*1152}"]
        return L
    tw = {}
    def first(i): return i == 0 or order[i] != order[i - 1]
    def wload(i):
        m = order[i]
        L = wrows(m) if first(i) else []
        sr = "s[16:19]" if m == "n" else "s[20:23]"
        L.append(f"s_add_u32 m0, s54, {(i%D)*16384}")
        L += [f"buffer_load_dwordx4 v{vDW+j}, {sr}, s57 offen offset:{1024*j} lds" for j in range(4)]
        L.append(f"s_add_u32 s57, s57, {(128 if m == 'n' else 144)*1152}")
        return L
    def aload(i):
        m = order[i]
        L = []
        if first(i): L += ["s_lshl_b32 s56, s6, 11", f"s_add_u32 s56, s56, {dict(n=72, a=0, b=64)[m]*512}"]
        L += [f"buffer_load_dwordx4 {R(AR+(i%D)*20+4*rt,4)}, v{vA+rt}, s[40:43], s56 offen{LSC}" for rt in range(5)]
        L.append("s_add_u32 s56, s56, 8192")
        return L
    def run(L, i):
        for x in L:
            t = a(x)
            if x.endswith(" lds"): tw[i] = t
    def publish():
        a.wait_vm(store_tok)
        a("s_barrier")
        stamp(a, 4)
        a(f"""
        s_lshl_b32 s32, s24, 4
        s_add_u32 s32, s32, s25
        s_lshl_b32 s32, s32, 7
        s_lshl_b32 s33, s6, 6
        v_add_lshl_u32 v9, v0, s33, 16
        v_mov_b32 v10, 1
        buffer_store_dword v10, v9, s[72:75], s32 offen sc0 sc1
        """)
    a(f"""
    s_mul_i32 s32, s3, 30
    s_add_u32 s32, s32, s4
    s_cmp_ge_u32 s4, 30
    s_cselect_b32 s32, 999, s32
    s_cmp_lt_u32 s32, 234
    s_cbranch_scc1 {name}_go
    """)
    saved = list(a.vm)
    publish()
    a(f"s_branch {name}_done")
    a.label(name + "_go")
    a.vm = saved
    for i in range(D - 1): run(wload(i), i)
    a(f"""
    s_mul_i32 s30, s77, 5
    v_lshlrev_b32 v6, 9, v2
    v_lshl_add_u32 v6, v3, 4, v6
    """)
    for rt in range(5):
        a(f"""
        s_add_u32 s32, s30, {rt}
        s_lshr_b32 s33, s32, 1
        s_mul_i32 s33, s33, {360*512}
        s_and_b32 s32, s32, 1
        s_lshl_b32 s32, s32, 8
        s_add_u32 s33, s33, s32
        v_add_u32 v{vA+rt}, s33, v6
        """)
    a(f"""
    v_bfe_u32 v6, v0, 2, 2
    v_lshl_add_u32 v7, v2, 3, v6
    v_lshlrev_b32 v7, 7, v7
    v_lshrrev_b32 v8, 1, v6
    v_and_b32 v9, 1, v2
    v_lshl_or_b32 v8, v9, 1, v8
    v_xor_b32 v8, s6, v8
    v_lshl_add_u32 v7, v8, 5, v7
    v_and_b32 v6, 3, v0
    v_lshl_add_u32 v7, v6, 3, v7
    v_add_u32 v{vTR}, s54, v7
    v_xor_b32 v{vTR+1}, 32, v{vTR}
    v_xor_b32 v{vTR+2}, 64, v{vTR}
    v_xor_b32 v{vTR+3}, 96, v{vTR}
    """)
    def reads(i):
        return [f"ds_read_b64_tr_b16 {R(WF+(i%2)*16+4*ct+2*t,2)}, v{vTR+ct} offset:{(i%D)*16384+t*512}" for ct in range(4) for t in range(2)]
    def mfmas(i):
        return [f"{M16} {R(ACC+(ct*5+rt)*4,4)}, {R(WF+(i%2)*16+4*ct,4)}, {R(AR+(i%D)*20+4*rt,4)}, {R(ACC+(ct*5+rt)*4,4) if i else 0}"
                for rt in range(5) for ct in range(4)]
    if OFIRST:
        publish()
        poll(a, name + "_po", vFO, "s29", vSO)
        stamp(a, 7)
        for i in range(D): run(aload(i), None)
        nA = D
    else:
        publish()
        poll(a, name + "_pu", vFU, "s59")
        stamp(a, 6)
        for i in range(D - 1): run(aload(i), None)
        nA = D - 1
    a.wait_vm(tw[0])
    for x in reads(0): a(x)
    SW = 5 if OFIRST else 18
    for i in range(NSUB):
        n = i + D - 1
        fill = []
        if i + 1 < NSUB:
            a.wait_vm(tw[i + 1])
            fill += reads(i + 1)
        if n < NSUB: fill += wload(n)
        if OFIRST:
            if i == SW - 2: fill += [f"buffer_load_dword v{vSU}, v{vFU}, s[72:75], s59 offen sc0 sc1"]
            if i == SW - 1:
                poll(a, name + "_pu", vFU, "s59", vSU)
                stamp(a, 6)
            lim = SW - 1 if i < SW - 1 else NSUB - 1
            while nA <= min(n, lim):
                fill = aload(nA) + fill if i == SW - 1 else fill + aload(nA); nA += 1
                if i == SW - 1: break
            if i == SW - 1:
                while nA <= min(n, lim): fill += aload(nA); nA += 1
        else:
            if n == SW - 2: fill += [f"buffer_load_dword v{vSO}, v{vFO}, s[72:75], s29 offen sc0 sc1"]
            if n == SW:
                poll(a, name + "_po", vFO, "s29", vSO)
                stamp(a, 7)
            if n < NSUB: fill += aload(n)
        mf = mfmas(i)
        for x in interleave(mf, fill):
            t = a(x)
            if x.endswith(" lds"): tw[n] = t
    a.wait_lds_all()
    a("s_barrier")
    a("v_lshlrev_b32 v6, 4, v0")
    for c in range(1, 4):
        a(f"s_xor_b32 s32, s6, {c}\ns_mul_i32 s32, s32, {3*5120}\nv_add_u32 v7, s32, v6")
        for rt in range(5):
            a(f"ds_write_b128 v7, {R(ACC+(c*5+rt)*4,4)} offset:{(c-1)*5120+rt*1024}")
    a(f"""
    s_mul_i32 s32, s6, {3*5120}
    v_add_u32 v7, s32, v6
    v_add_u32 v8, s58, v3
    v_mul_lo_u32 v8, v8, s35
    s_lshl_b32 s32, s6, 5
    s_add_u32 s32, s32, s37
    v_lshl_add_u32 v8, v2, 3, v8
    v_add_u32 v8, s32, v8
    s_waitcnt lgkmcnt(0)
    s_barrier
    """)
    for rt in range(5):
        for c in range(3):
            a(f"ds_read_b128 {R(AR+(rt*3+c)*4,4)}, v7 offset:{c*5120+rt*1024}")
    for rt in range(5):
        o = ACC + rt * 4
        for c in range(3):
            for h in range(4): a(f"v_add_f32 v{o+h}, v{o+h}, v{AR+(rt*3+c)*4+h}")
        a(f"v_cvt_pk_bf16_f32 v{WF+2*rt}, v{o}, v{o+1}\nv_cvt_pk_bf16_f32 v{WF+2*rt+1}, v{o+2}, v{o+3}")
        a(f"s_mov_b32 s32, {rt*16*1152}")
        a(f"buffer_store_dwordx2 {R(WF+2*rt,2)}, v8, s[48:51], s32 offen")
    a.label(name + "_done")
    if STAMPS: a("s_waitcnt vmcnt(0)")
    stamp(a, 2); stamp(a, 5, True); stamp_flush(a, 1, 14, 6, 0)
    a("s_endpgm")

def gen_k2(name):
    a = Asm()
    a.raw(f".p2align 8\n.globl {name}\n.type {name},@function\n{name}:")
    a(f"""
    s_cmp_ge_u32 s2, 512
    s_cbranch_scc1 {name}_end
    s_load_dwordx4 s[8:11], s[0:1], 40
    s_load_dwordx2 s[14:15], s[0:1], 88
    s_load_dwordx2 s[66:67], s[0:1], 16
    s_load_dwordx2 s[68:69], s[0:1], 56
    s_load_dwordx2 s[70:71], s[0:1], 72
    s_and_b32 s3, s2, 7
    s_bfe_u32 s4, s2, 0x50003
    v_lshrrev_b32 v1, 6, v0
    v_and_b32 v0, 63, v0
    v_readfirstlane_b32 s6, v1
    """)
    stamp(a, 0, True); stamp(a, 1)
    a("s_cmp_ge_u32 s2, 256")
    a(f"s_cbranch_scc1 {name}_g")
    if 'noattn' in EXP: a("s_endpgm")
    pre = a
    a = Asm(); a.lg = list(pre.lg); a.hist = list(pre.hist)
    gen_attn(a, name)
    at = a
    a = Asm(); a.lg = list(pre.lg); a.hist = list(pre.hist)
    a.label(name + "_g")
    if 'nospat' in EXP: a("s_endpgm")
    gen_spat(a, name)
    a.label(name + "_end")
    a("s_endpgm")
    text = pre.text() + at.text() + a.text()
    return text, dict(name=name, vgpr=256, sgpr=102 if STAMPS else 80, grid=512, block=256, lds=81920)
```

```python
from asmlib import *
from layout import *
import os, math, struct
EXP = os.environ.get('KEXP', '')
def envi(k, d): return int(os.environ.get(k, str(d)))

def f32h(x): return "0x%08x" % struct.unpack("<I", struct.pack("<f", x))[0]
LOG2E = math.log2(math.e)
GC1 = -2.0 * math.sqrt(2.0 / math.pi) * LOG2E
GC2 = GC1 * 0.044715
CQ = LOG2E / math.sqrt(18.0)
M32 = "v_mfma_f32_32x32x16_bf16"
M16 = "v_mfma_f32_16x16x32_bf16"
SC = " sc0 sc1"
KN = 'sf_kernel'
def R(b, n): return f"v[{b}:{b+n-1}]"

def srd(a, d, ptr, off, nbytes):
    a(f"""
    s_add_u32 s{d}, s{ptr}, {off}
    s_addc_u32 s{d+1}, s{ptr+1}, 0
    s_mov_b32 s{d+2}, {nbytes}
    s_mov_b32 s{d+3}, 0x00020000
    """)

def vpi(a, d, s, t):
    a(f"""
    v_and_b32 v{d}, 0x33, v{s}
    v_and_b32 v{t}, 4, v{s}
    v_lshl_or_b32 v{d}, v{t}, 1, v{d}
    v_and_b32 v{t}, 8, v{s}
    v_lshrrev_b32 v{t}, 1, v{t}
    v_or_b32 v{d}, v{d}, v{t}
    """)

def emit_mix(a, mf, fill):
    seq = []
    n, m = len(mf), len(fill); k = 0
    for i, x in enumerate(mf):
        seq.append(x)
        tgt = min(m, (i + 1) * m // max(1, n - 1)) if n > 1 else m
        while k < tgt or (0 < k < m and (fill[k-1].startswith("s_mov_b64 exec, s") or fill[k].startswith("s_mov_b64 exec, -1"))):
            seq.append(fill[k]); k += 1
    seq += fill[k:]
    last = None
    for x in seq:
        t = a(x)
        if x.endswith(" lds"): last = t
    return last

def nonce_sample(a, v):
    srd(a, 48, 68, 0, 256)
    a(f"v_mov_b32 v{v+2}, 0\nbuffer_load_dwordx2 {R(v,2)}, v{v+2}, s[48:51], 0 offen{SC}")
def nonce_get(a, lbl, v):
    a(f"v_cmp_ne_u32 vcc, 0, v{v}")
    a(f"s_cbranch_vccnz {lbl}_ok")
    saved = list(a.vm)
    a("s_mov_b32 s38, 0x40000")
    a.label(lbl)
    a(f"""
    buffer_load_dwordx2 {R(v,2)}, v{v+2}, s[48:51], 0 offen{SC}
    s_waitcnt vmcnt(0)
    v_cmp_ne_u32 vcc, 0, v{v}
    s_sub_u32 s38, s38, 1
    s_cbranch_vccnz {lbl}_ok
    s_cmp_lg_u32 s38, 0
    s_cbranch_scc1 {lbl}
    """)
    a.label(lbl + "_ok")
    a.vm = saved
    a(f"v_readfirstlane_b32 s76, v{v}\nv_readfirstlane_b32 s77, v{v+1}")
def publish(a, line_sgpr, tok=None):
    a(f"""
    s_lshl_b32 s39, s{line_sgpr}, 7
    s_lshl_b32 s38, s6, 6
    v_add_lshl_u32 v10, v0, s38, 20
    v_mov_b32 v12, s76
    v_mov_b32 v13, s77
    """)
    if tok is None: a("s_waitcnt vmcnt(0)")
    else: a.wait_vm(tok)
    a.wait_lds_all()
    a("s_barrier")
    a(f"buffer_store_dwordx2 v[12:13], v10, s[72:75], s39 offen{SC}")
def flag_sample(vdst, voff): return f"buffer_load_dwordx2 {R(vdst,2)}, v{voff}, s[72:75], 0 offen{SC}"
def poll(a, lbl, voff, vt, pre=False, sleep=4):
    if pre:
        a(f"v_cmp_ne_u64 vcc, s[76:77], {R(vt,2)}")
        a(f"s_cbranch_vccz {lbl}_ok")
    saved = list(a.vm)
    a("s_mov_b32 s38, 0x40000")
    a.label(lbl)
    a(f"""
    {flag_sample(vt, voff)}
    s_waitcnt vmcnt(0)
    v_cmp_ne_u64 vcc, s[76:77], {R(vt,2)}
    s_sub_u32 s38, s38, 1
    s_cbranch_vccz {lbl}_ok
    s_cmp_eq_u32 s38, 0
    s_cbranch_scc1 {lbl}_ok
    s_sleep {sleep}
    s_branch {lbl}
    """)
    a.label(lbl + "_ok")
    if pre: a.vm = saved
def poll_wg(a, lbl, voff, vt, sleep=4):
    saved = list(a.vm)
    a(f"s_cmp_lg_u32 s6, 0\ns_cbranch_scc1 {lbl}_ok")
    poll(a, lbl, voff, vt, sleep=sleep)
    a.vm = saved
    a("s_barrier")

def x_dma_setup(a, vDX):
    srd(a, 16, 8, 0, 2048 * 1152)
    a(f"""
    s_lshl_b32 s26, s5, 7
    s_lshl_b32 s27, s6, 5
    s_add_u32 s26, s26, s27
    v_lshrrev_b32 v4, 3, v0
    v_and_b32 v5, 7, v0
    s_lshl_b32 s55, s6, 12
    s_mov_b32 s56, 0
    s_movk_i32 s28, 1152
    """)
    for j in range(4):
        a(f"""
        v_add_u32 v6, {8*j}, v4
        v_bfe_u32 v7, v6, 1, 3
        v_xor_b32 v7, v7, v5
        v_add_u32 v6, s26, v6
        v_mul_lo_u32 v6, v6, s28
        v_lshl_add_u32 v6, v7, 4, v6
        v_subrev_u32 v{vDX+j}, {1024*j}, v6
        """)
def x_dma(vDX, lds):
    return [f"s_add_u32 m0, s55, {lds}"] + \
           [f"buffer_load_dwordx4 v{vDX+j}, s[16:19], s56 offen offset:{1024*j} lds" for j in range(4)] + ["s_add_u32 s56, s56, 128"]
def x_read_setup(a, vX, rowbase_sgpr):
    a("v_and_b32 v8, 31, v0")
    vpi(a, 9, 8, 10)
    a(f"""
    v_lshrrev_b32 v10, 5, v0
    v_bfe_u32 v11, v9, 1, 3
    v_xor_b32 v11, v11, v10
    v_lshlrev_b32 v11, 4, v11
    v_lshl_add_u32 v11, v9, 7, v11
    v_add_u32 v{vX}, s{rowbase_sgpr}, v11
    v_xor_b32 v{vX+1}, 32, v{vX}
    v_xor_b32 v{vX+2}, 64, v{vX}
    v_xor_b32 v{vX+3}, 96, v{vX}
    v_mov_b32 v15, v10
    """)

def qk_prefetch(a, vt):
    if 'qkpf' not in EXP: return
    a(f"""
    s_lshr_b32 s25, s4, 2
    s_lshl_b32 s25, s25, 2
    s_add_u32 s25, s25, s6
    s_lshl_b32 s25, s25, 6
    s_mul_i32 s29, s7, 288
    s_add_u32 s29, s29, 28
    """)
    for j in range(2):
        a(f"""
        v_add_u32 v{vt}, s25, v0
        v_add_u32 v{vt}, {2048*j}, v{vt}
        v_mul_u32_u24 v{vt+1}, 10923, v{vt}
        v_lshrrev_b32 v{vt+1}, 16, v{vt+1}
        v_mul_u32_u24 v{vt+2}, 6, v{vt+1}
        v_sub_u32 v{vt}, v{vt}, v{vt+2}
        v_mul_lo_u32 v{vt+1}, v{vt+1}, s28
        v_lshl_add_u32 v{vt+1}, v{vt}, 7, v{vt+1}
        v_cmp_lt_u32 vcc, 2, v{vt}
        v_mov_b32 v{vt+2}, {1152-384}
        v_cndmask_b32 v{vt+2}, 0, v{vt+2}, vcc
        v_add_u32 v{vt+1}, v{vt+1}, v{vt+2}
        buffer_load_dword v{vt+3+j}, v{vt+1}, s[20:23], s29 offen
        """)

def gelu(a, regs, T, cv):
    for g in range(0, len(regs), 8):
        grp = regs[g:g + 8]
        for k, r in enumerate(grp): a(f"v_mul_f32 v{T+k}, v{r}, v{r}")
        for k, r in enumerate(grp): a(f"v_fmaak_f32 v{T+k}, v{T+k}, v{cv}, {f32h(GC1)}")
        for k, r in enumerate(grp): a(f"v_mul_f32 v{T+k}, v{T+k}, v{r}")
        for k, r in enumerate(grp): a(f"v_exp_f32 v{T+k}, v{T+k}")
        for k, r in enumerate(grp): a(f"v_add_f32 v{T+k}, 1.0, v{T+k}")
        for k, r in enumerate(grp): a(f"v_rcp_f32 v{T+k}, v{T+k}")
        for k, r in enumerate(grp): a(f"v_mul_f32 v{r}, v{r}, v{T+k}")

def bulk_prefetch(a):
    if 'nobpf' in EXP: return
    srd(a, 40, 12, 0, 576 * 9216)
    srd(a, 44, 10, 0, 576 * 3456)
    a(f"""
    s_lshl_b32 s25, s2, 2
    s_add_u32 s25, s25, s6
    s_lshl_b32 s25, s25, 10
    s_add_u32 s26, s25, {2048*1024}
    s_add_u32 s27, s25, {4096*1024}
    v_lshlrev_b32 v3, 4, v0
    buffer_load_dwordx4 v[252:255], v3, s[16:19], s25 offen ;nowaw
    buffer_load_dwordx4 v[252:255], v3, s[40:43], s25 offen ;nowaw
    buffer_load_dwordx4 v[252:255], v3, s[44:47], s25 offen ;nowaw
    buffer_load_dwordx4 v[252:255], v3, s[40:43], s26 offen ;nowaw
    buffer_load_dwordx4 v[252:255], v3, s[16:19], s26 offen ;nowaw
    buffer_load_dwordx4 v[252:255], v3, s[40:43], s27 offen ;nowaw
    """)

WB_ = 32768
def gen_z(a, name, is2, nun=3):
    ACC = 16
    RING = 3 if nun == 4 else 4
    WSL = 4096 * nun
    if nun == 4:
        XF, WF, vX, vW, vDX, vDW = 144, 208, 240, 244, 246, 250
        T = 144; CV = 152; NON = 154; PK = 160
    else:
        XF, WF, vX, vW, vDX, vDW = 112, 176, 216, 220, 224, 228
        T = 160; CV = 168; NON = 170; PK = 112
    x_dma_setup(a, vDX)
    srd(a, 20, 12, 0, 576 * 9216)
    a(f"""
    s_lshl_b32 s26, s64, 7
    s_add_u32 s26, s26, {4608 if is2 else 0}
    s_lshl_b32 s27, s6, 3
    s_movk_i32 s28, 9216
    v_lshlrev_b32 v6, 1, v4
    v_and_b32 v6, 4, v6
    v_xor_b32 v6, v6, v5
    v_lshlrev_b32 v6, 4, v6
    v_add_u32 v6, s26, v6
    v_add_u32 v7, s27, v4
    v_mul_lo_u32 v7, v7, s28
    v_add_u32 v{vDW}, v7, v6
    s_lshl_b32 s54, s6, 10
    s_add_u32 s54, s54, {WB_}
    s_mov_b32 s57, 0
    """)
    def wl(H):
        L = []
        for un in range(nun):
            L.append(f"s_add_u32 m0, s54, {(H%RING)*WSL + un*4096 - un*128}")
            L.append(f"buffer_load_dwordx4 v{vDW}, s[20:23], s57 offen offset:{un*128} lds")
        L.append(f"s_add_u32 s57, s57, {32*9216}")
        return L
    tx, tw = {}, {}
    tx[0] = emit_mix(a, x_dma(vDX, 0), [])
    tw[0] = emit_mix(a, wl(0), []); tw[1] = emit_mix(a, wl(1), [])
    tx[1] = emit_mix(a, x_dma(vDX, 16384), [])
    for H in range(2, RING): tw[H] = emit_mix(a, wl(H), [])
    bulk_prefetch(a)
    a("s_and_b32 s29, s6, 1\ns_lshl_b32 s29, s29, 13")
    x_read_setup(a, vX, 29)
    a(f"""
    v_bfe_u32 v12, v0, 2, 2
    v_lshl_add_u32 v13, v10, 3, v12
    v_lshlrev_b32 v13, 7, v13
    v_and_b32 v14, 2, v12
    v_lshl_add_u32 v13, v14, 5, v13
    v_and_b32 v14, 16, v0
    v_lshl_add_u32 v13, v14, 1, v13
    v_and_b32 v14, 1, v0
    v_lshl_add_u32 v13, v14, 4, v13
    v_and_b32 v14, 2, v0
    v_lshl_add_u32 v13, v14, 2, v13
    s_lshr_b32 s30, s6, 1
    s_mul_i32 s31, s30, {nun}
    """)
    for ct in range(min(nun, 2) if nun == 4 else nun):
        a(f"""
        s_add_u32 s32, s31, {ct}
        s_and_b32 s33, s32, 1
        s_lshl_b32 s33, s33, 6
        s_lshr_b32 s32, s32, 1
        s_lshl_b32 s32, s32, 12
        s_add_u32 s32, s32, {WB_}
        v_xor_b32 v14, s33, v13
        v_add_u32 v{vW+ct}, s32, v14
        """)
    def wbase(ct): return (vW + ct % 2, (ct // 2) * 4096) if nun == 4 else (vW + ct, 0)
    def xreads(S, us):
        return [f"ds_read_b128 {R(XF+(S%2)*32+(u*2+rg)*4,4)}, v{vX+u} offset:{(S%2)*16384+rg*4096}" for u in us for rg in range(2)]
    def reads(U):
        S, u = U // 4, U % 4; H, up = U // 2, U % 2
        L = []
        if u == 0: L += xreads(S, [0])
        for ct in range(nun):
            r, o = wbase(ct)
            for t in range(2):
                L.append(f"ds_read_b64_tr_b16 {R(WF+(U%2)*4*nun+4*ct+2*t,2)}, v{r} offset:{(H%RING)*WSL+o+up*2048+t*512}")
        if u == 0: L += xreads(S, [1])
        if u == 1: L += xreads(S, [2, 3])
        return L
    def mfmas(U):
        S, u = U // 4, U % 4
        L = []
        for ct in range(nun):
            for rg in range(2):
                c = ACC + (rg * nun + ct) * 16
                xf, wf = R(XF + (S % 2) * 32 + (u * 2 + rg) * 4, 4), R(WF + (U % 2) * 4 * nun + 4 * ct, 4)
                A, B = (xf, wf) if is2 else (wf, xf)
                L.append(f"{M32} {R(c,16)}, {A}, {B}, {R(c,16) if U else 0}")
        return L
    a.wait_vm(tw[0]); a("s_barrier")
    stamp(a, 2)
    for x in reads(0): a(x)
    def step(U):
        S, u = U // 4, U % 4; H, up = U // 2, U % 2
        ld = []; key = None
        if up == 1 and H + 1 < 18:
            a.wait_vm(tw[H + 1])
            if u == 3: a.wait_vm(tx[S + 1])
            a.wait_lds_all(); a("s_barrier")
            if H + RING < 18: ld = wl(H + RING); key = (tw, H + RING)
        if u == 2 and S + 2 < 9:
            ld = x_dma(vDX, (S % 2) * 16384); key = (tx, S + 2)
        fill = reads(U + 1) if U + 1 < 36 else []
        t = emit_mix(a, mfmas(U), fill[:4] + ld + fill[4:])
        if key: key[0][key[1]] = t
    step(0)
    def body(it):
        for U in range(1 + 8 * it, 9 + 8 * it): step(U)
    a.roll(body, 4, "s65", name + "_l")
    for U in range(33, 36): step(U)
    stamp(a, 3)
    a(f"""
    s_and_b32 s29, s6, 1
    s_lshl_b32 s32, s5, 2
    s_lshl_b32 s33, s29, 1
    s_add_u32 s32, s32, s33
    s_lshl_b32 s33, s64, 1
    s_add_u32 s33, s33, s31
    s_nop 7
    """)
    nonce_sample(a, NON)
    a(f"v_mov_b32 v{CV}, {f32h(GC2)}")
    if not is2:
        srd(a, 60, 14, WS_Z1, Z_BYTES)
        a(f"""
        v_lshlrev_b32 v1, 9, v15
        v_lshl_add_u32 v252, v9, 4, v1
        s_mul_i32 s34, s32, 72
        s_add_u32 s34, s34, s33
        s_lshl_b32 s34, s34, 11
        s_lshl_b32 s71, s5, 4
        s_add_u32 s71, s71, s7
        s_add_u32 s71, s71, {FL_Z1}
        """)
        a("s_add_u32 s70, s34, 2048" if nun == 4 else "s_mov_b32 s70, 0x7ff00000")
        for rg in range(2):
            c = ACC + rg * nun * 16
            gelu(a, list(range(c, c + 16)), T, CV)
            for i in range(8): a(f"v_cvt_pk_bf16_f32 v{PK+8*rg+i}, v{c+2*i}, v{c+2*i+1}")
            a(f"s_add_u32 s35, s34, {rg*72*2048}")
            for j in range(2): a(f"buffer_store_dwordx4 {R(PK+8*rg+4*j,4)}, v252, s[60:63], s35 offen offset:{1024*j}{SC}")
        if nun == 4:
            for k in range(6):
                c = ACC + ((k // 3) * 4 + 1 + k % 3) * 16
                gelu(a, list(range(c, c + 16)), T, CV)
                for i in range(8): a(f"v_cvt_pk_bf16_f32 v{200+8*k+i}, v{c+2*i}, v{c+2*i+1}")
        nonce_get(a, name + "_n", NON)
        a("s_barrier")
        return
    srd(a, 44, 14, WS_STAT, 16 * 12 * 2048)
    S1, S2 = 176, 192
    SCR = 73728
    a(f"""
    v_bfe_u32 v1, v0, 4, 1
    v_lshlrev_b32 v1, 9, v1
    v_lshl_add_u32 v1, v15, 5, v1
    v_bfe_u32 v2, v0, 3, 1
    v_lshl_add_u32 v1, v2, 6, v1
    v_bfe_u32 v2, v0, 2, 1
    v_lshl_add_u32 v1, v2, 4, v1
    s_lshl_b32 s35, s30, 10
    s_lshl_b32 s36, s29, 8
    s_add_u32 s35, s35, s36
    s_add_u32 s35, s35, {SCR}
    v_add_u32 v1, s35, v1
    """)
    fil = None
    if 'pf5' in EXP:
        a("""
        s_load_dwordx2 s[8:9], s[0:1], 40
        s_load_dwordx2 s[10:11], s[0:1], 56
        s_load_dwordx2 s[12:13], s[0:1], 16
        """)
        srd(a, 16, 8, 0, 2048 * 4096)
        srd(a, 20, 10, 0, 2304 * 1152)
        srd(a, 40, 12, 0, 576 * 1152)
        a(f"""
        s_mul_i32 s36, s5, 12
        s_add_u32 s36, s36, s7
        s_lshl_b32 s36, s36, 2
        s_add_u32 s36, s36, s6
        s_lshl_b32 s36, s36, 10
        v_lshlrev_b32 v3, 4, v0
        """)
        L = [(16, j) for j in range(11)] + [(20, j) for j in range(4)] + [(40, 0)]
        L = [[f"s_add_u32 s37, s36, {j*768*1024}", f"buffer_load_dwordx4 v[252:255], v3, s[{r}:{r+3}], s37 offen ;nowaw"] for r, j in L]
        fil = [L[2 * g] + L[2 * g + 1] for g in range(8)] + [[]] * 4
    for rg in range(2):
        for ct in range(3):
            c = ACC + (rg * 3 + ct) * 16
            gelu(a, list(range(c, c + 16)), T, CV, fil)
            for i in range(16):
                if ct == 0:
                    a(f"v_mul_f32 v{S2+i}, v{c+i}, v{c+i}")
                else:
                    a(f"v_fmac_f32 v{S2+i}, v{c+i}, v{c+i}")
                    a(f"v_add_f32 v{S1+i}, v{c+i}, v{S1+i if ct == 2 else c-16+i}")
        for q in range(16): a(f"v_permlane16_swap_b32 v{S1+q}, v{S2+q}")
        for q in range(16): a(f"v_add_f32 v{S1+q}, v{S1+q}, v{S2+q}")
        for q in range(8):
            a(f"v_add_f32_dpp v{S2+q}, v{S1+q}, v{S1+q} row_ror:8 row_mask:0xf bank_mask:0x3")
            a(f"v_add_f32_dpp v{S2+q}, v{S1+q+8}, v{S1+q+8} row_ror:8 row_mask:0xf bank_mask:0xc")
        o = XF + 4 * rg
        for q in range(4):
            a(f"v_add_f32_dpp v{o+q}, v{S2+q}, v{S2+q} row_half_mirror row_mask:0xf bank_mask:0x5")
            a(f"v_add_f32_dpp v{o+q}, v{S2+q+4}, v{S2+q+4} row_half_mirror row_mask:0xf bank_mask:0xa")
        for q in range(4): a(f"v_add_f32_dpp v{o+q}, v{o+q}, v{o+q} quad_perm:[1,0,3,2] row_mask:0xf bank_mask:0xf")
        for q in range(4): a(f"v_add_f32_dpp v{o+q}, v{o+q}, v{o+q} quad_perm:[2,3,0,1] row_mask:0xf bank_mask:0xf")
        a(f"ds_write_b128 v1, {R(o,4)} offset:{rg*128}")
    nonce_get(a, name + "_n", NON)
    LB = 112
    a(f"""
    s_lshl_b32 s36, s6, 7
    s_add_u32 s36, s36, {SCR}
    v_lshl_add_u32 v2, v8, 2, s36
    s_mul_i32 s34, s5, 12
    s_add_u32 s35, s34, s7
    s_lshl_b32 s35, s35, 11
    s_lshl_b32 s37, s6, 9
    s_add_u32 s35, s35, s37
    s_lshl_b32 s34, s34, 11
    s_add_u32 s34, s34, s37
    v_lshlrev_b32 v3, 4, v8
    v_lshl_add_u32 v4, v15, 30, v3
    v_lshl_add_u32 v3, v15, 11, v3
    v_mov_b32 v{LB+2}, s76
    v_mov_b32 v{LB+3}, s77
    s_waitcnt lgkmcnt(0)
    s_barrier
    ds_read_b32 v{LB}, v2
    ds_read_b32 v{LB+1}, v2 offset:512
    ds_read_b32 v{LB+4}, v2 offset:1024
    ds_read_b32 v{LB+5}, v2 offset:1536
    v_add_f32 v{LB}, v{LB}, v{LB+4}
    v_add_f32 v{LB+1}, v{LB+1}, v{LB+5}
    buffer_store_dwordx4 {R(LB,4)}, v4, s[44:47], s35 offen{SC}
    v_mov_b32 v174, v2
    v_mov_b32 v175, v3
    """)
    stamp(a, 4)
    spat_setup(a)
    srd(a, 40, 14, WS_Z2, Z_BYTES)
    a("s_mov_b32 s38, 0x40000")
    a.label(name + "_p")
    G = 120
    for n in range(6):
        a(f"s_add_u32 s36, s34, {n*4096}")
        a(f"buffer_load_dwordx4 {R(G+4*n,4)}, v175, s[44:47], s36 offen{SC}")
    a("s_mov_b64 s[36:37], 0")
    for n in range(6):
        a(f"v_cmp_ne_u64 vcc, s[76:77], {R(G+4*n+2,2)}")
        a("s_or_b64 s[36:37], s[36:37], vcc")
    a(f"""
    s_cmp_eq_u64 s[36:37], 0
    s_cbranch_scc1 {name}_p_ok
    s_sub_u32 s38, s38, 1
    s_cmp_eq_u32 s38, 0
    s_cbranch_scc1 {name}_p_ok
    s_sleep 2
    s_branch {name}_p
    """)
    a.label(name + "_p_ok")
    stamp(a, 5)
    for n in range(1, 6):
        for i in range(2): a(f"v_add_f32 v{G+i}, v{G+i}, v{G+4*n+i}")
    inv = f32h(1.0 / 2304.0)
    a(f"""
    v_mov_b32 v{G+2}, v{G}
    v_mov_b32 v{G+3}, v{G+1}
    v_permlane32_swap_b32 v{G}, v{G+2}
    v_permlane32_swap_b32 v{G+1}, v{G+3}
    v_add_f32 v{G}, v{G}, v{G+2}
    v_add_f32 v{G+1}, v{G+1}, v{G+3}
    v_mul_f32 v{G}, {inv}, v{G}
    v_mul_f32 v{G+1}, {inv}, v{G+1}
    v_fma_f32 v{G+1}, -v{G}, v{G}, v{G+1}
    v_max_f32 v{G+1}, 0, v{G+1}
    v_add_f32 v{G+1}, {f32h(1e-5)}, v{G+1}
    v_rsq_f32 v{G+1}, v{G+1}
    v_mul_f32_e64 v{G}, -v{G}, v{G+1}
    ds_write_b32 v174, v{G} offset:2048
    ds_write_b32 v174, v{G+1} offset:2560
    s_and_b32 s36, s6, 1
    s_lshl_b32 s36, s36, 8
    s_add_u32 s36, s36, {SCR + 2048}
    v_lshl_add_u32 v4, v15, 5, s36
    s_lshl_b32 s34, s33, 7
    s_lshl_b32 s35, s32, 1
    s_add_u32 s34, s34, s35
    s_lshl_b32 s34, s34, 10
    s_waitcnt lgkmcnt(0)
    s_barrier
    """)
    AB = [(S1, S2), (112, 128)]
    for rg in range(2):
        b_, a_ = AB[rg]
        for j in range(2):
            for h in range(2):
                a(f"ds_read_b128 {R(b_+8*j+4*h,4)}, v4 offset:{rg*128+j*64+h*16}")
                a(f"ds_read_b128 {R(a_+8*j+4*h,4)}, v4 offset:{512+rg*128+j*64+h*16}")
    k = 0
    for rg in range(2):
        b_, a_ = AB[rg]
        for ct in range(3):
            c = ACC + (rg * 3 + ct) * 16
            p = 144 + (k % 3) * 8; k += 1
            for i in range(16): a(f"v_fma_f32 v{c+i}, v{c+i}, v{a_+i}, v{b_+i}")
            for i in range(8): a(f"v_cvt_pk_bf16_f32 v{p+i}, v{c+2*i}, v{c+2*i+1}")
            a(f"s_add_u32 s35, s34, {ct*128*1024 + rg*2048}")
            for j in range(2): a(f"buffer_store_dwordx4 {R(p+4*j,4)}, v1, s[40:43], s35 offen offset:{1024*j}{SC}")
    a(f"s_lshl_b32 s36, s7, 4\ns_add_u32 s36, s36, s5\ns_add_u32 s36, s36, {FL_Z2}")
    if 'fine' in EXP: stamp(a, 11)
    publish(a, 36)

def w36_setup(a, vDW, isv):
    srd(a, 20, 10, 0, 576 * 3456)
    a(f"""
    s_mul_i32 s26, s7, 288
    s_add_u32 s26, s26, {2304 if isv else 0}
    s_movk_i32 s28, 3456
    s_mul_i32 s54, s6, 2304
    s_mov_b32 s57, 0
    s_mov_b32 s52, 0xffff
    s_mov_b32 s53, 0
    s_lshl_b32 s27, s6, {3 if isv else 2}
    """)
    for j in range(3):
        a(f"""
        v_add_u32 v6, {64*j}, v0
        v_mul_u32_u24 v7, 1821, v6
        v_lshrrev_b32 v7, 16, v7
        v_mul_u32_u24 v11, 36, v7
        v_sub_u32 v6, v6, v11
        v_cmp_lt_u32 vcc, 17, v6
        v_cndmask_b32_e64 v11, 0, 1, vcc
        v_mul_u32_u24 v12, 18, v11
        v_sub_u32 v6, v6, v12
        v_add_u32 v7, s27, v7
        """)
        if isv:
            a("""
            v_lshl_add_u32 v7, v11, 2, v7
            v_mul_lo_u32 v7, v7, s28
            """)
        else:
            a("""
            v_mul_lo_u32 v7, v7, s28
            v_mul_u32_u24 v12, 1152, v11
            v_add_u32 v7, v7, v12
            """)
        a(f"""
        v_lshl_add_u32 v7, v6, 4, v7
        v_add_u32 v7, s26, v7
        v_subrev_u32 v{vDW+j}, {1024*j}, v7
        """)
def w36_dma(vDW, lds, rows):
    return [f"s_add_u32 m0, s54, {lds}"] + \
           [f"buffer_load_dwordx4 v{vDW+j}, s[20:23], s57 offen offset:{1024*j} lds" for j in range(2)] + \
           ["s_mov_b64 exec, s[52:53]", f"buffer_load_dwordx4 v{vDW+2}, s[20:23], s57 offen offset:2048 lds", "s_mov_b64 exec, -1",
            f"s_add_u32 s57, s57, {rows*3456}"]

def gen_qk(a, name):
    ACC = 16; XF = 160; WF = 168
    vX, vW, vWb, vDX, vDW = 240, 1, 2, 244, 248
    WB = 32768; WS_ = 9216
    x_dma_setup(a, vDX)
    tx, tw = {}, {}
    tx[0] = emit_mix(a, x_dma(vDX, 0), [])
    w36_setup(a, vDW, False)
    for U in range(4): tw[U] = emit_mix(a, w36_dma(vDW, WB + U * WS_, 16), [])
    tx[1] = emit_mix(a, x_dma(vDX, 16384), [])
    bulk_prefetch(a)
    x_read_setup(a, vX, 55)
    a(f"""
    v_bfe_u32 v12, v0, 2, 2
    v_lshl_add_u32 v13, v10, 3, v12
    v_mul_u32_u24 v13, 576, v13
    v_bfe_u32 v14, v0, 4, 1
    v_mul_u32_u24 v14, 288, v14
    v_add_u32 v13, v13, v14
    v_add_u32 v13, {WB}, v13
    v_and_b32 v14, 3, v0
    v_mul_u32_u24 v14, 72, v14
    v_add_u32 v{vWb}, v13, v14
    v_add_u32 v{vWb}, 32, v{vWb}
    v_and_b32 v14, 1, v0
    v_lshl_add_u32 v13, v14, 4, v13
    v_and_b32 v14, 2, v0
    v_lshl_add_u32 v{vW}, v14, 2, v13
    """)
    def reads(U):
        S, u = U // 4, U % 4
        L = [f"ds_read_b128 {R(XF+(U%2)*4,4)}, v{vX+u} offset:{(S%2)*16384}"]
        base = (U % 4) * WS_
        for h in range(9):
            for t in range(2):
                if h < 8: L.append(f"ds_read_b64_tr_b16 {R(WF+(U%2)*36+4*h+2*t,2)}, v{vW} offset:{base+t*2304+36*h+(4 if h%2 else 0)}")
                else: L.append(f"ds_read_b64_tr_b16 {R(WF+(U%2)*36+4*h+2*t,2)}, v{vWb} offset:{base+t*2304}")
        return L
    def mfmas(U):
        return [f"{M32} {R(ACC+16*h,16)}, {R(WF+(U%2)*36+4*h,4)}, {R(XF+(U%2)*4,4)}, {R(ACC+16*h,16) if U else 0}" for h in range(9)]
    a.wait_vm(tw[0]); a("s_barrier")
    stamp(a, 2)
    for x in reads(0): a(x)
    def step(U):
        S, u = U // 4, U % 4
        if U + 1 < 36:
            a.wait_vm(tw[U + 1])
            if u == 3: a.wait_vm(tx[S + 1])
            a.wait_lds_all(); a("s_barrier")
        fill = reads(U + 1) if U + 1 < 36 else []
        mf = mfmas(U)
        ld = w36_dma(vDW, WB + (U % 4) * WS_, 16) if U + 4 < 36 else []
        xl = x_dma(vDX, (S % 2) * 16384) if (u == 3 and S + 2 < 9) else []
        groups = []
        cur = []
        for x in ld + xl:
            cur.append(x)
            if x.endswith(" lds"): groups.append(cur); cur = []
            elif x.startswith("s_mov_b64 exec, -1") or x.startswith("s_add_u32 s5"): groups[-1] += cur; cur = []
        t = None
        gi = [1, 4, 7] if not xl else [0, 1, 2, 4, 5, 6, 7]
        for i, m in enumerate(mf):
            a(m)
            for x in fill[3 * i:3 * i + 3]: a(x)
            if i in gi and groups:
                for x in groups.pop(0):
                    tk = a(x)
                    if x.endswith(" lds"):
                        if "s[20:23]" in x: tw[U + 4] = tk
                        else: t = tk
        assert not groups
        if t is not None: tx[S + 2] = t
    step(0)
    def body(it):
        for U in range(1 + 8 * it, 9 + 8 * it): step(U)
    a.roll(body, 4, "s65", name + "_l")
    for U in range(33, 36): step(U)
    stamp(a, 3)
    NON = 240
    nonce_sample(a, NON)
    srd(a, 40, 14, WS_QA, WS_GATE - WS_QA)
    srd(a, 44, 14, WS_KV, KV_BYTES)
    a(f"""
    s_lshl_b32 s32, s5, 2
    s_add_u32 s32, s32, s6
    s_lshl_b32 s33, s7, 9
    s_add_u32 s33, s33, s32
    s_lshl_b32 s34, s33, 10
    s_mul_i32 s35, s33, {KV_TILE}
    s_lshl_b32 s36, s33, 7
    s_add_u32 s36, s36, {WS_QB - WS_QA}
    s_add_u32 s37, s35, {KV_KB}
    v_lshlrev_b32 v1, 9, v15
    v_lshl_add_u32 v1, v9, 4, v1
    v_lshlrev_b32 v2, 4, v0
    v_lshlrev_b32 v3, 14, v15
    v_lshl_add_u32 v3, v9, 2, v3
    s_mov_b32 s38, {2*64*KV_TILE}
    v_mul_lo_u32 v4, v15, s38
    v_lshl_add_u32 v4, v8, 2, v4
    v_mov_b32 v6, {f32h(CQ)}
    """)
    for h in range(9):
        c = ACC + 16 * h
        p = WF + (h % 4) * 8
        for i in range(8): a(f"v_mul_f32 v{c+i}, v6, v{c+i}")
        for i in range(8): a(f"v_cvt_pk_bf16_f32 v{p+i}, v{c+2*i}, v{c+2*i+1}")
        if h < 8:
            a(f"buffer_store_dwordx4 {R(p,4)}, v1, s[40:43], s34 offen{SC}")
            a(f"buffer_store_dwordx4 {R(p+4,4)}, v2, s[44:47], s35 offen{SC}")
            a(f"s_add_u32 s34, s34, {64*1024}\ns_add_u32 s35, s35, {64*KV_TILE}")
        else:
            for aa in range(2):
                for eo in range(2):
                    hh = 4 * aa + eo
                    a(f"s_add_u32 s38, s36, {hh*8192}\ns_add_u32 s39, s37, {hh*64*KV_TILE}")
                    a(f"buffer_store_dword v{p+2*aa+eo}, v3, s[40:43], s38 offen{SC}")
                    a(f"buffer_store_dword v{p+4+2*aa+eo}, v4, s[44:47], s39 offen{SC}")
    nonce_get(a, name + "_n", NON)
    a(f"s_lshl_b32 s36, s7, 4\ns_add_u32 s36, s36, s5\ns_add_u32 s36, s36, {FL_QK}")
    publish(a, 36)
    spat_setup(a)

def gen_pf(a, name):
    if 'nopf4' in EXP: return
    srd(a, 40, 68, 0, 2304 * 1152)
    srd(a, 44, 66, 0, 576 * 1152)
    a(f"""
    s_lshr_b32 s30, s4, 2
    s_lshl_b32 s30, s30, 3
    s_add_u32 s30, s30, s3
    s_lshl_b32 s30, s30, 2
    s_add_u32 s30, s30, s6
    s_lshl_b32 s31, s30, 10
    s_lshl_b32 s30, s30, 15
    v_lshrrev_b32 v5, 3, v0
    v_and_b32 v6, 7, v0
    v_lshlrev_b32 v5, 12, v5
    v_lshl_add_u32 v5, v6, 4, v5
    """)
    L = [f"buffer_load_dwordx4 v[16:19], v5, s[20:23], s30 offen offset:{128*j} ;nowaw" for j in range(3, 32)]
    if 'pf2' not in EXP:
        for j in range(11): L.append(f"s_add_u32 s32, s31, {j*256*1024}\nbuffer_load_dwordx4 v[16:19], v1, s[40:43], s32 offen ;nowaw")
        for j in range(3): L.append(f"s_add_u32 s32, s31, {j*256*1024}\nbuffer_load_dwordx4 v[16:19], v1, s[44:47], s32 offen ;nowaw")
    for x in L: a(x)
    a("s_waitcnt vmcnt(0)")

def gen_v(a, name):
    ACC = 16; WF = 104; XF = 160
    vX, vW, vG, vDX, vDW = 144, 148, 149, 150, 154
    WB = 32768; WS_ = 9216; GB = 79872; SL = 0
    a(f"s_setprio {envi('VPRIO', 1)}")
    x_dma_setup(a, vDX)
    tx, tw = {}, {}
    tx[0] = emit_mix(a, x_dma(vDX, 0), [])
    w36_setup(a, vDW, True)
    srd(a, 48, 66, 0, 1152)
    a(f"""
    v_lshlrev_b32 v2, 4, v0
    s_mov_b32 m0, {GB}
    buffer_load_dwordx4 v2, s[48:51], 0 offen lds
    buffer_load_dwordx4 v2, s[48:51], 0 offen offset:1024 lds
    """)
    for H in range(2): tw[H] = emit_mix(a, w36_dma(vDW, WB + H * WS_, 32), [])
    qk_prefetch(a, 244)
    tx[1] = emit_mix(a, x_dma(vDX, 16384), [])
    for H in range(2, 4): tw[H] = emit_mix(a, w36_dma(vDW, WB + H * WS_, 32), [])
    bulk_prefetch(a)
    x_read_setup(a, vX, 55)
    a(f"""
    v_bfe_u32 v12, v0, 2, 2
    v_lshl_add_u32 v13, v10, 2, v12
    v_mul_u32_u24 v13, 576, v13
    v_and_b32 v14, 16, v0
    v_lshl_add_u32 v13, v14, 1, v13
    v_and_b32 v14, 3, v0
    v_lshl_add_u32 v13, v14, 3, v13
    v_add_u32 v{vW}, {WB}, v13
    v_lshlrev_b32 v{vG}, 4, v10
    v_add_u32 v{vG}, {GB}, v{vG}
    s_mov_b32 s60, 0xffff0000
    s_mov_b32 s61, 0xffff0000
    """)
    def reads(U):
        S, u = U // 4, U % 4; H, up = U // 2, U % 2
        L = []
        if u == 0: L += [f"ds_read_b128 {R(XF+(S%2)*16+4*k,4)}, v{vX+k} offset:{(S%2)*16384}" for k in range(2)]
        if u == 1: L += [f"ds_read_b128 {R(XF+(S%2)*16+4*k,4)}, v{vX+k} offset:{(S%2)*16384}" for k in range(2, 4)]
        for T in range(5):
            for t in range(2):
                L.append(f"ds_read_b64_tr_b16 {R(WF+(U%2)*20+4*T+2*t,2)}, v{vW} offset:{(H%4)*WS_+up*4608+t*288+T*64}")
        L += ["s_mov_b64 exec, s[60:61]", f"ds_read_b128 {R(WF+(U%2)*20+16,4)}, v{vG} offset:{(U%8)*32} ;nowaw", "s_mov_b64 exec, -1"]
        if U % 8 == 7: L.append(f"v_add_u32 v{vG}, 256, v{vG}")
        return L
    def mfmas(U):
        S, u = U // 4, U % 4
        return [f"{M32} {R(ACC+16*T,16)}, {R(XF+(S%2)*16+4*u,4)}, {R(WF+(U%2)*20+4*T,4)}, {R(ACC+16*T,16) if U else 0}" for T in range(5)]
    a.wait_vm(tw[0]); a("s_barrier")
    stamp(a, 2)
    for x in reads(0): a(x)
    def step(U):
        S, u = U // 4, U % 4; H, up = U // 2, U % 2
        ld = []; key = None
        if up == 1 and H + 1 < 18:
            a.wait_vm(tw[H + 1])
            if u == 3: a.wait_vm(tx[S + 1])
            a.wait_lds_all(); a("s_barrier")
            if H + 4 < 18: ld = w36_dma(vDW, WB + (H % 4) * WS_, 32); key = (tw, H + 4)
        if u == 2 and S + 2 < 9:
            ld = x_dma(vDX, (S % 2) * 16384); key = (tx, S + 2)
        fill = reads(U + 1) if U + 1 < 36 else []
        t = emit_mix(a, mfmas(U), fill[:4] + ld + fill[4:])
        if key: key[0][key[1]] = t
    step(0)
    def body(it):
        for U in range(1 + 8 * it, 9 + 8 * it): step(U)
    a.roll(body, 4, "s65", name + "_l")
    for U in range(33, 36): step(U)
    stamp(a, 3)
    a(f"""
    v_mov_b32 v252, 0
    s_mov_b32 s70, 0x7ff00000
    s_lshl_b32 s71, s5, 4
    s_add_u32 s71, s71, s7
    s_add_u32 s71, s71, {FL_Z1 + 12}
    """)
    NON = 240
    nonce_sample(a, NON)
    srd(a, 44, 14, WS_KV, KV_BYTES)
    srd(a, 40, 14, WS_GATE, 32768)
    a(f"""
    s_lshl_b32 s32, s5, 2
    s_add_u32 s32, s32, s6
    s_lshl_b32 s33, s7, 9
    s_add_u32 s33, s33, s32
    s_mul_i32 s35, s33, {KV_TILE}
    s_add_u32 s35, s35, {KV_V}
    s_mul_i32 s36, s6, 10368
    s_add_u32 s36, s36, {SL}
    v_mul_u32_u24 v5, {KV_VR}, v15
    v_add_u32 v5, s36, v5
    """)
    for T in range(5):
        c = ACC + 16 * T
        p = WF + (T % 4) * 8
        a(f"""
        v_add_u32 v1, {32*T}, v8
        v_mul_u32_u24 v2, 3641, v1
        v_lshrrev_b32 v2, 16, v2
        v_mul_u32_u24 v3, 18, v2
        v_sub_u32 v3, v1, v3
        """)
        if T == 4:
            a("""
            v_cmp_lt_u32 vcc, 15, v8
            v_and_b32 v4, 7, v8
            v_cndmask_b32 v2, v2, v4, vcc
            v_lshrrev_b32 v4, 3, v8
            v_add_u32 v4, 16, v4
            v_cndmask_b32 v3, v3, v4, vcc
            """)
        a(f"""
        v_mul_u32_u24 v2, 1280, v2
        v_lshl_add_u32 v2, v3, 4, v2
        v_add_u32 v{150+T}, v2, v5
        """)
        for i in range(8): a(f"v_cvt_pk_bf16_f32 v{p+i}, v{c+2*i}, v{c+2*i+1}")
        if T == 4:
            a("""
            v_cmp_lt_u32 s[62:63], 23, v8
            v_mov_b32 v4, 0x3f803f80
            v_cndmask_b32 v4, v4, 0, s[62:63]
            """)
            for i in range(8): a(f"v_cndmask_b32 v{p+i}, v{p+i}, v4, vcc")
        for j in range(2): a(f"ds_write_b128 v{150+T}, {R(p+4*j,4)} offset:{2*KV_VR*j}")
    c = ACC + 64
    for r in range(16): a(f"v_mul_f32 v{c+r}, {f32h(-LOG2E)}, v{c+r}")
    for r in range(16): a(f"v_exp_f32 v{c+r}, v{c+r}")
    for r in range(16): a(f"v_add_f32 v{c+r}, 1.0, v{c+r}")
    for r in range(16): a(f"v_rcp_f32 v{c+r}, v{c+r}")
    a(f"""
    v_lshlrev_b32 v1, 5, v15
    v_add_u32 v1, s36, v1
    s_mov_b32 s60, 0x10000
    s_mov_b32 s61, 0x10000
    s_mov_b64 exec, s[60:61]
    """)
    for j in range(2):
        for h in range(2):
            a(f"ds_write_b128 v1, {R(c+8*j+4*h,4)} offset:{10240+64*j+16*h}")
    a(f"""
    s_mov_b64 exec, -1
    v_lshlrev_b32 v1, 4, v0
    v_add_u32 v1, s36, v1
    v_lshlrev_b32 v2, 2, v8
    v_add_u32 v3, s36, v2
    v_lshl_add_u32 v2, v15, 30, v2
    s_mov_b32 s38, {64*KV_TILE - 1280}
    s_lshl_b32 s37, s7, 13
    s_lshl_b32 s39, s32, 7
    s_add_u32 s37, s37, s39
    s_waitcnt lgkmcnt(0)
    ds_read_b32 v160, v3 offset:10240
    """)
    for i in range(10): a(f"ds_read_b128 {R(164+4*i,4)}, v1 offset:{1024*i}")
    a(f"buffer_store_dword v160, v2, s[40:43], s37 offen{SC}")
    for i in range(10):
        a(f"""
        v_add_u32 v4, {64*i}, v0
        v_mul_u32_u24 v5, 820, v4
        v_lshrrev_b32 v5, 16, v5
        v_mul_lo_u32 v5, v5, s38
        v_lshl_add_u32 v{204+i}, v4, 4, v5
        """)
        a(f"buffer_store_dwordx4 {R(164+4*i,4)}, v{204+i}, s[44:47], s35 offen{SC}")
    nonce_get(a, name + "_n", NON)
    a(f"s_lshl_b32 s36, s7, 4\ns_add_u32 s36, s36, s5\ns_add_u32 s36, s36, {FL_V}")
    publish(a, 36)

exec(open(os.path.join(os.path.dirname(os.path.abspath(__file__)), "kf2.py")).read())
```

```python
WS_QA   = 0x0000000
WS_QB   = 0x0200000
WS_GATE = 0x0240000
WS_STAT = 0x0250000
WS_KV   = 0x0300000
KV_TILE = 2560
KV_V    = 1024
KV_VR   = 320
KV_KB   = 1024 + 4 * KV_VR
WS_Z1   = 0x0800000
WS_Z2   = 0x1100000
WS_AF   = 0x1A00000
AF_BYTES = 64 * 360 * 512
Z_BYTES = 0x900000
KV_BYTES = 32 * 64 * KV_TILE
WS_END = WS_AF + AF_BYTES

def pi(i):
    return (i & ~12) | ((i & 4) << 1) | ((i & 8) >> 1)

WS_STAMP = 0x3000000
WS_FLAG = 0x2600000
FL_GO = 0
FL_Z2 = 256
FL_Z1 = 512
FL_QK = 768
FL_V  = 832
FL_U  = 1024
FL_O  = 1280
FL_BYTES = 1536 * 128
WS_OB = 0x2640000
```

```python
import sys
from layout import *
HDR = open("gated_mix__mha_block__mixer_gmlp__prompt.s.ref").read().split("; Override launch geometry")[0]

def assemble(kernels, path):
    s = HDR
    for _, d in kernels:
        if d['name'].startswith("gated"):
            s += f"; @launch grid=({d['grid']},1,1) block=({d['block']},1,1) lds={d['lds']}\n"
            continue
        s += f"; @launch kernel={d['name']} grid=({d['grid']},1,1) block=({d['block']},1,1) lds={d['lds']}\n"
    s += '.amdgcn_target "amdgcn-amd-amdhsa--gfx950"\n.text\n'
    for t, _ in kernels:
        s += t
    s += '.section .rodata,"a"\n'
    for _, d in kernels:
        acc = d.get("acc", (d["vgpr"] + 3) // 4 * 4)
        s += f""".p2align 6
.amdhsa_kernel {d['name']}
  .amdhsa_next_free_vgpr {d['vgpr']}
  .amdhsa_next_free_sgpr {d['sgpr']}
  .amdhsa_accum_offset {min(acc, 256)}
  .amdhsa_group_segment_fixed_size 0
  .amdhsa_kernarg_size 96
  .amdhsa_user_sgpr_count 2
  .amdhsa_user_sgpr_kernarg_segment_ptr 1
  .amdhsa_system_sgpr_workgroup_id_x 1
.end_amdhsa_kernel
"""
    open(path, "w").write(s)

if __name__ == "__main__":
    which = sys.argv[1]
    path = sys.argv[2]
    ks = []
    if "F" in which:
        from kf import gen_kf
        ks.append(gen_kf("gated_mix__mha_block__mixer_gmlp__prompt_kernel"))
    if "f" in which:
        from kf import gen_kf
        ks.append(gen_kf("sf_kernel"))
    if "1" in which:
        from k1 import gen_k1
        ks.append(gen_k1("s1_kernel"))
    if "2" in which:
        from k2 import gen_k2
        ks.append(gen_k2("s2_kernel"))
    if "3" in which:
        from k3 import gen_k3
        ks.append(gen_k3("s3_kernel"))
    assemble(ks, path)
```

```python
from asmlib import *
from layout import *
import os, math, struct
EXP = os.environ.get('KEXP', '')
def envi(k, d): return int(os.environ.get(k, str(d)))

def f32h(x): return "0x%08x" % struct.unpack("<I", struct.pack("<f", x))[0]
LOG2E = math.log2(math.e)
GC1 = -2.0 * math.sqrt(2.0 / math.pi) * LOG2E
GC2 = GC1 * 0.044715
CQ = LOG2E / math.sqrt(18.0)
M32 = "v_mfma_f32_32x32x16_bf16"
M16 = "v_mfma_f32_16x16x32_bf16"
SC = " sc0 sc1"
KN = 'sf_kernel'
def R(b, n): return f"v[{b}:{b+n-1}]"

def srd(a, d, ptr, off, nbytes):
    a(f"""
    s_add_u32 s{d}, s{ptr}, {off}
    s_addc_u32 s{d+1}, s{ptr+1}, 0
    s_mov_b32 s{d+2}, {nbytes}
    s_mov_b32 s{d+3}, 0x00020000
    """)

def vpi(a, d, s, t):
    a(f"""
    v_and_b32 v{d}, 0x33, v{s}
    v_and_b32 v{t}, 4, v{s}
    v_lshl_or_b32 v{d}, v{t}, 1, v{d}
    v_and_b32 v{t}, 8, v{s}
    v_lshrrev_b32 v{t}, 1, v{t}
    v_or_b32 v{d}, v{d}, v{t}
    """)

def emit_mix(a, mf, fill):
    seq = []
    n, m = len(mf), len(fill); k = 0
    for i, x in enumerate(mf):
        seq.append(x)
        tgt = min(m, (i + 1) * m // max(1, n - 1)) if n > 1 else m
        while k < tgt or (0 < k < m and (fill[k-1].startswith("s_mov_b64 exec, s") or fill[k].startswith("s_mov_b64 exec, -1"))):
            seq.append(fill[k]); k += 1
    seq += fill[k:]
    last = None
    for x in seq:
        t = a(x)
        if x.endswith(" lds"): last = t
    return last

def nonce_sample(a, v):
    srd(a, 48, 68, 0, 256)
    a(f"v_mov_b32 v{v+2}, 0\nbuffer_load_dwordx2 {R(v,2)}, v{v+2}, s[48:51], 0 offen{SC}")
def nonce_get(a, lbl, v):
    a(f"v_cmp_ne_u32 vcc, 0, v{v}")
    a(f"s_cbranch_vccnz {lbl}_ok")
    saved = list(a.vm)
    a("s_mov_b32 s38, 0x40000")
    a.label(lbl)
    a(f"""
    buffer_load_dwordx2 {R(v,2)}, v{v+2}, s[48:51], 0 offen{SC}
    s_waitcnt vmcnt(0)
    v_cmp_ne_u32 vcc, 0, v{v}
    s_sub_u32 s38, s38, 1
    s_cbranch_vccnz {lbl}_ok
    s_cmp_lg_u32 s38, 0
    s_cbranch_scc1 {lbl}
    """)
    a.label(lbl + "_ok")
    a.vm = saved
    a(f"v_readfirstlane_b32 s76, v{v}\nv_readfirstlane_b32 s77, v{v+1}")
def publish(a, line_sgpr, tok=None):
    a(f"""
    s_lshl_b32 s39, s{line_sgpr}, 7
    s_lshl_b32 s38, s6, 6
    v_add_lshl_u32 v10, v0, s38, 20
    v_mov_b32 v12, s76
    v_mov_b32 v13, s77
    """)
    if tok is None: a("s_waitcnt vmcnt(0)")
    else: a.wait_vm(tok)
    a.wait_lds_all()
    a("s_barrier")
    a(f"buffer_store_dwordx2 v[12:13], v10, s[72:75], s39 offen{SC}")
def flag_sample(vdst, voff): return f"buffer_load_dwordx2 {R(vdst,2)}, v{voff}, s[72:75], 0 offen{SC}"
def poll(a, lbl, voff, vt, pre=False, sleep=4):
    if pre:
        a(f"v_cmp_ne_u64 vcc, s[76:77], {R(vt,2)}")
        a(f"s_cbranch_vccz {lbl}_ok")
    saved = list(a.vm)
    a("s_mov_b32 s38, 0x40000")
    a.label(lbl)
    a(f"""
    {flag_sample(vt, voff)}
    s_waitcnt vmcnt(0)
    v_cmp_ne_u64 vcc, s[76:77], {R(vt,2)}
    s_sub_u32 s38, s38, 1
    s_cbranch_vccz {lbl}_ok
    s_cmp_eq_u32 s38, 0
    s_cbranch_scc1 {lbl}_ok
    s_sleep {sleep}
    s_branch {lbl}
    """)
    a.label(lbl + "_ok")
    if pre: a.vm = saved
def poll_wg(a, lbl, voff, vt, sleep=4):
    saved = list(a.vm)
    a(f"s_cmp_lg_u32 s6, 0\ns_cbranch_scc1 {lbl}_ok")
    poll(a, lbl, voff, vt, sleep=sleep)
    a.vm = saved
    a("s_barrier")

def x_dma_setup(a, vDX):
    srd(a, 16, 8, 0, 2048 * 1152)
    a(f"""
    s_lshl_b32 s26, s5, 7
    s_lshl_b32 s27, s6, 5
    s_add_u32 s26, s26, s27
    v_lshrrev_b32 v4, 3, v0
    v_and_b32 v5, 7, v0
    s_lshl_b32 s55, s6, 12
    s_mov_b32 s56, 0
    s_movk_i32 s28, 1152
    """)
    for j in range(4):
        a(f"""
        v_add_u32 v6, {8*j}, v4
        v_bfe_u32 v7, v6, 1, 3
        v_xor_b32 v7, v7, v5
        v_add_u32 v6, s26, v6
        v_mul_lo_u32 v6, v6, s28
        v_lshl_add_u32 v6, v7, 4, v6
        v_subrev_u32 v{vDX+j}, {1024*j}, v6
        """)
def x_dma(vDX, lds):
    return [f"s_add_u32 m0, s55, {lds}"] + \
           [f"buffer_load_dwordx4 v{vDX+j}, s[16:19], s56 offen offset:{1024*j} lds" for j in range(4)] + ["s_add_u32 s56, s56, 128"]
def x_read_setup(a, vX, rowbase_sgpr):
    a("v_and_b32 v8, 31, v0")
    vpi(a, 9, 8, 10)
    a(f"""
    v_lshrrev_b32 v10, 5, v0
    v_bfe_u32 v11, v9, 1, 3
    v_xor_b32 v11, v11, v10
    v_lshlrev_b32 v11, 4, v11
    v_lshl_add_u32 v11, v9, 7, v11
    v_add_u32 v{vX}, s{rowbase_sgpr}, v11
    v_xor_b32 v{vX+1}, 32, v{vX}
    v_xor_b32 v{vX+2}, 64, v{vX}
    v_xor_b32 v{vX+3}, 96, v{vX}
    v_mov_b32 v15, v10
    """)

def qk_prefetch(a, vt):
    if 'qkpf' not in EXP: return
    a(f"""
    s_lshr_b32 s25, s4, 2
    s_lshl_b32 s25, s25, 2
    s_add_u32 s25, s25, s6
    s_lshl_b32 s25, s25, 6
    s_mul_i32 s29, s7, 288
    s_add_u32 s29, s29, 28
    """)
    for j in range(2):
        a(f"""
        v_add_u32 v{vt}, s25, v0
        v_add_u32 v{vt}, {2048*j}, v{vt}
        v_mul_u32_u24 v{vt+1}, 10923, v{vt}
        v_lshrrev_b32 v{vt+1}, 16, v{vt+1}
        v_mul_u32_u24 v{vt+2}, 6, v{vt+1}
        v_sub_u32 v{vt}, v{vt}, v{vt+2}
        v_mul_lo_u32 v{vt+1}, v{vt+1}, s28
        v_lshl_add_u32 v{vt+1}, v{vt}, 7, v{vt+1}
        v_cmp_lt_u32 vcc, 2, v{vt}
        v_mov_b32 v{vt+2}, {1152-384}
        v_cndmask_b32 v{vt+2}, 0, v{vt+2}, vcc
        v_add_u32 v{vt+1}, v{vt+1}, v{vt+2}
        buffer_load_dword v{vt+3+j}, v{vt+1}, s[20:23], s29 offen
        """)

def gelu(a, regs, T, cv):
    for g in range(0, len(regs), 8):
        grp = regs[g:g + 8]
        for k, r in enumerate(grp): a(f"v_mul_f32 v{T+k}, v{r}, v{r}")
        for k, r in enumerate(grp): a(f"v_fmaak_f32 v{T+k}, v{T+k}, v{cv}, {f32h(GC1)}")
        for k, r in enumerate(grp): a(f"v_mul_f32 v{T+k}, v{T+k}, v{r}")
        for k, r in enumerate(grp): a(f"v_exp_f32 v{T+k}, v{T+k}")
        for k, r in enumerate(grp): a(f"v_add_f32 v{T+k}, 1.0, v{T+k}")
        for k, r in enumerate(grp): a(f"v_rcp_f32 v{T+k}, v{T+k}")
        for k, r in enumerate(grp): a(f"v_mul_f32 v{r}, v{r}, v{T+k}")

def bulk_prefetch(a):
    if 'nobpf' in EXP: return
    srd(a, 40, 12, 0, 576 * 9216)
    srd(a, 44, 10, 0, 576 * 3456)
    a(f"""
    s_lshl_b32 s25, s2, 2
    s_add_u32 s25, s25, s6
    s_lshl_b32 s25, s25, 10
    s_add_u32 s26, s25, {2048*1024}
    s_add_u32 s27, s25, {4096*1024}
    v_lshlrev_b32 v3, 4, v0
    buffer_load_dwordx4 v[252:255], v3, s[16:19], s25 offen ;nowaw
    buffer_load_dwordx4 v[252:255], v3, s[40:43], s25 offen ;nowaw
    buffer_load_dwordx4 v[252:255], v3, s[44:47], s25 offen ;nowaw
    buffer_load_dwordx4 v[252:255], v3, s[40:43], s26 offen ;nowaw
    buffer_load_dwordx4 v[252:255], v3, s[16:19], s26 offen ;nowaw
    buffer_load_dwordx4 v[252:255], v3, s[40:43], s27 offen ;nowaw
    """)

WB_ = 32768
def gen_z(a, name, is2, nun=3):
    ACC = 16
    RING = 3 if nun == 4 else 4
    WSL = 4096 * nun
    if nun == 4:
        XF, WF, vX, vW, vDX, vDW = 144, 208, 240, 244, 246, 250
        T = 144; CV = 152; NON = 154; PK = 160
    else:
        XF, WF, vX, vW, vDX, vDW = 112, 176, 216, 220, 224, 228
        T = 160; CV = 168; NON = 170; PK = 112
    x_dma_setup(a, vDX)
    srd(a, 20, 12, 0, 576 * 9216)
    a(f"""
    s_lshl_b32 s26, s64, 7
    s_add_u32 s26, s26, {4608 if is2 else 0}
    s_lshl_b32 s27, s6, 3
    s_movk_i32 s28, 9216
    v_lshlrev_b32 v6, 1, v4
    v_and_b32 v6, 4, v6
    v_xor_b32 v6, v6, v5
    v_lshlrev_b32 v6, 4, v6
    v_add_u32 v6, s26, v6
    v_add_u32 v7, s27, v4
    v_mul_lo_u32 v7, v7, s28
    v_add_u32 v{vDW}, v7, v6
    s_lshl_b32 s54, s6, 10
    s_add_u32 s54, s54, {WB_}
    s_mov_b32 s57, 0
    """)
    def wl(H):
        L = []
        for un in range(nun):
            L.append(f"s_add_u32 m0, s54, {(H%RING)*WSL + un*4096 - un*128}")
            L.append(f"buffer_load_dwordx4 v{vDW}, s[20:23], s57 offen offset:{un*128} lds")
        L.append(f"s_add_u32 s57, s57, {32*9216}")
        return L
    tx, tw = {}, {}
    tx[0] = emit_mix(a, x_dma(vDX, 0), [])
    tw[0] = emit_mix(a, wl(0), []); tw[1] = emit_mix(a, wl(1), [])
    tx[1] = emit_mix(a, x_dma(vDX, 16384), [])
    for H in range(2, RING): tw[H] = emit_mix(a, wl(H), [])
    bulk_prefetch(a)
    a("s_and_b32 s29, s6, 1\ns_lshl_b32 s29, s29, 13")
    x_read_setup(a, vX, 29)
    a(f"""
    v_bfe_u32 v12, v0, 2, 2
    v_lshl_add_u32 v13, v10, 3, v12
    v_lshlrev_b32 v13, 7, v13
    v_and_b32 v14, 2, v12
    v_lshl_add_u32 v13, v14, 5, v13
    v_and_b32 v14, 16, v0
    v_lshl_add_u32 v13, v14, 1, v13
    v_and_b32 v14, 1, v0
    v_lshl_add_u32 v13, v14, 4, v13
    v_and_b32 v14, 2, v0
    v_lshl_add_u32 v13, v14, 2, v13
    s_lshr_b32 s30, s6, 1
    s_mul_i32 s31, s30, {nun}
    """)
    for ct in range(min(nun, 2) if nun == 4 else nun):
        a(f"""
        s_add_u32 s32, s31, {ct}
        s_and_b32 s33, s32, 1
        s_lshl_b32 s33, s33, 6
        s_lshr_b32 s32, s32, 1
        s_lshl_b32 s32, s32, 12
        s_add_u32 s32, s32, {WB_}
        v_xor_b32 v14, s33, v13
        v_add_u32 v{vW+ct}, s32, v14
        """)
    def wbase(ct): return (vW + ct % 2, (ct // 2) * 4096) if nun == 4 else (vW + ct, 0)
    def xreads(S, us):
        return [f"ds_read_b128 {R(XF+(S%2)*32+(u*2+rg)*4,4)}, v{vX+u} offset:{(S%2)*16384+rg*4096}" for u in us for rg in range(2)]
    def reads(U):
        S, u = U // 4, U % 4; H, up = U // 2, U % 2
        L = []
        if u == 0: L += xreads(S, [0])
        for ct in range(nun):
            r, o = wbase(ct)
            for t in range(2):
                L.append(f"ds_read_b64_tr_b16 {R(WF+(U%2)*4*nun+4*ct+2*t,2)}, v{r} offset:{(H%RING)*WSL+o+up*2048+t*512}")
        if u == 0: L += xreads(S, [1])
        if u == 1: L += xreads(S, [2, 3])
        return L
    def mfmas(U):
        S, u = U // 4, U % 4
        L = []
        for ct in range(nun):
            for rg in range(2):
                c = ACC + (rg * nun + ct) * 16
                xf, wf = R(XF + (S % 2) * 32 + (u * 2 + rg) * 4, 4), R(WF + (U % 2) * 4 * nun + 4 * ct, 4)
                A, B = (xf, wf) if is2 else (wf, xf)
                L.append(f"{M32} {R(c,16)}, {A}, {B}, {R(c,16) if U else 0}")
        return L
    a.wait_vm(tw[0]); a("s_waitcnt lgkmcnt(0)"); a("s_barrier")
    stamp(a, 2)
    for x in reads(0): a(x)
    def step(U):
        S, u = U // 4, U % 4; H, up = U // 2, U % 2
        ld = []; key = None
        if up == 1 and H + 1 < 18:
            a.wait_vm(tw[H + 1])
            if u == 3: a.wait_vm(tx[S + 1])
            a.wait_lds_all(); a("s_barrier")
            if H + RING < 18: ld = wl(H + RING); key = (tw, H + RING)
        if u == 2 and S + 2 < 9:
            ld = x_dma(vDX, (S % 2) * 16384); key = (tx, S + 2)
        fill = reads(U + 1) if U + 1 < 36 else []
        t = emit_mix(a, mfmas(U), fill[:4] + ld + fill[4:])
        if key: key[0][key[1]] = t
    step(0)
    def body(it):
        for U in range(1 + 8 * it, 9 + 8 * it): step(U)
    a.roll(body, 4, "s65", name + "_l")
    for U in range(33, 36): step(U)
    stamp(a, 3)
    a(f"""
    s_and_b32 s29, s6, 1
    s_lshl_b32 s32, s5, 2
    s_lshl_b32 s33, s29, 1
    s_add_u32 s32, s32, s33
    s_lshl_b32 s33, s64, 1
    s_add_u32 s33, s33, s31
    s_nop 7
    """)
    nonce_sample(a, NON)
    a(f"v_mov_b32 v{CV}, {f32h(GC2)}")
    if not is2:
        srd(a, 60, 14, WS_Z1, Z_BYTES)
        a(f"""
        v_lshlrev_b32 v1, 9, v15
        v_lshl_add_u32 v252, v9, 4, v1
        s_mul_i32 s34, s32, 72
        s_add_u32 s34, s34, s33
        s_lshl_b32 s34, s34, 11
        s_lshl_b32 s71, s5, 4
        s_add_u32 s71, s71, s7
        s_add_u32 s71, s71, {FL_Z1}
        """)
        a("s_add_u32 s70, s34, 2048" if nun == 4 else "s_mov_b32 s70, 0x7ff00000")
        for rg in range(2):
            c = ACC + rg * nun * 16
            gelu(a, list(range(c, c + 16)), T, CV)
            for i in range(8): a(f"v_cvt_pk_bf16_f32 v{PK+8*rg+i}, v{c+2*i}, v{c+2*i+1}")
            a(f"s_add_u32 s35, s34, {rg*72*2048}")
            for j in range(2): a(f"buffer_store_dwordx4 {R(PK+8*rg+4*j,4)}, v252, s[60:63], s35 offen offset:{1024*j}{SC}")
        if nun == 4:
            for k in range(6):
                c = ACC + ((k // 3) * 4 + 1 + k % 3) * 16
                gelu(a, list(range(c, c + 16)), T, CV)
                for i in range(8): a(f"v_cvt_pk_bf16_f32 v{200+8*k+i}, v{c+2*i}, v{c+2*i+1}")
        nonce_get(a, name + "_n", NON)
        a("s_barrier")
        return
    srd(a, 44, 14, WS_STAT, 16 * 12 * 2048)
    S1, S2 = 176, 192
    SCR = 73728
    a(f"""
    v_bfe_u32 v1, v0, 4, 1
    v_lshlrev_b32 v1, 9, v1
    v_lshl_add_u32 v1, v15, 5, v1
    v_bfe_u32 v2, v0, 3, 1
    v_lshl_add_u32 v1, v2, 6, v1
    v_bfe_u32 v2, v0, 2, 1
    v_lshl_add_u32 v1, v2, 4, v1
    s_lshl_b32 s35, s30, 10
    s_lshl_b32 s36, s29, 8
    s_add_u32 s35, s35, s36
    s_add_u32 s35, s35, {SCR}
    v_add_u32 v1, s35, v1
    """)
    fil = None
    if 'pf5' in EXP:
        a("""
        s_load_dwordx2 s[8:9], s[0:1], 40
        s_load_dwordx2 s[10:11], s[0:1], 56
        s_load_dwordx2 s[12:13], s[0:1], 16
        """)
        srd(a, 16, 8, 0, 2048 * 4096)
        srd(a, 20, 10, 0, 2304 * 1152)
        srd(a, 40, 12, 0, 576 * 1152)
        a(f"""
        s_mul_i32 s36, s5, 12
        s_add_u32 s36, s36, s7
        s_lshl_b32 s36, s36, 2
        s_add_u32 s36, s36, s6
        s_lshl_b32 s36, s36, 10
        v_lshlrev_b32 v3, 4, v0
        """)
        L = [(16, j) for j in range(11)] + [(20, j) for j in range(4)] + [(40, 0)]
        L = [[f"s_add_u32 s37, s36, {j*768*1024}", f"buffer_load_dwordx4 v[252:255], v3, s[{r}:{r+3}], s37 offen ;nowaw"] for r, j in L]
        fil = [L[2 * g] + L[2 * g + 1] for g in range(8)] + [[]] * 4
    for rg in range(2):
        for ct in range(3):
            c = ACC + (rg * 3 + ct) * 16
            gelu(a, list(range(c, c + 16)), T, CV, fil)
            for i in range(16):
                if ct == 0:
                    a(f"v_mul_f32 v{S2+i}, v{c+i}, v{c+i}")
                else:
                    a(f"v_fmac_f32 v{S2+i}, v{c+i}, v{c+i}")
                    a(f"v_add_f32 v{S1+i}, v{c+i}, v{S1+i if ct == 2 else c-16+i}")
        for q in range(16): a(f"v_permlane16_swap_b32 v{S1+q}, v{S2+q}")
        for q in range(16): a(f"v_add_f32 v{S1+q}, v{S1+q}, v{S2+q}")
        for q in range(8):
            a(f"v_add_f32_dpp v{S2+q}, v{S1+q}, v{S1+q} row_ror:8 row_mask:0xf bank_mask:0x3")
            a(f"v_add_f32_dpp v{S2+q}, v{S1+q+8}, v{S1+q+8} row_ror:8 row_mask:0xf bank_mask:0xc")
        o = XF + 4 * rg
        for q in range(4):
            a(f"v_add_f32_dpp v{o+q}, v{S2+q}, v{S2+q} row_half_mirror row_mask:0xf bank_mask:0x5")
            a(f"v_add_f32_dpp v{o+q}, v{S2+q+4}, v{S2+q+4} row_half_mirror row_mask:0xf bank_mask:0xa")
        for q in range(4): a(f"v_add_f32_dpp v{o+q}, v{o+q}, v{o+q} quad_perm:[1,0,3,2] row_mask:0xf bank_mask:0xf")
        for q in range(4): a(f"v_add_f32_dpp v{o+q}, v{o+q}, v{o+q} quad_perm:[2,3,0,1] row_mask:0xf bank_mask:0xf")
        a(f"ds_write_b128 v1, {R(o,4)} offset:{rg*128}")
    nonce_get(a, name + "_n", NON)
    LB = 112
    a(f"""
    s_lshl_b32 s36, s6, 7
    s_add_u32 s36, s36, {SCR}
    v_lshl_add_u32 v2, v8, 2, s36
    s_mul_i32 s34, s5, 12
    s_add_u32 s35, s34, s7
    s_lshl_b32 s35, s35, 11
    s_lshl_b32 s37, s6, 9
    s_add_u32 s35, s35, s37
    s_lshl_b32 s34, s34, 11
    s_add_u32 s34, s34, s37
    v_lshlrev_b32 v3, 4, v8
    v_lshl_add_u32 v4, v15, 30, v3
    v_lshl_add_u32 v3, v15, 11, v3
    v_mov_b32 v{LB+2}, s76
    v_mov_b32 v{LB+3}, s77
    s_waitcnt lgkmcnt(0)
    s_barrier
    ds_read_b32 v{LB}, v2
    ds_read_b32 v{LB+1}, v2 offset:512
    ds_read_b32 v{LB+4}, v2 offset:1024
    ds_read_b32 v{LB+5}, v2 offset:1536
    v_add_f32 v{LB}, v{LB}, v{LB+4}
    v_add_f32 v{LB+1}, v{LB+1}, v{LB+5}
    buffer_store_dwordx4 {R(LB,4)}, v4, s[44:47], s35 offen{SC}
    v_mov_b32 v174, v2
    v_mov_b32 v175, v3
    """)
    stamp(a, 4)
    spat_setup(a)
    srd(a, 40, 14, WS_Z2, Z_BYTES)
    a("s_mov_b32 s38, 0x40000")
    a.label(name + "_p")
    G = 120
    for n in range(6):
        a(f"s_add_u32 s36, s34, {n*4096}")
        a(f"buffer_load_dwordx4 {R(G+4*n,4)}, v175, s[44:47], s36 offen{SC}")
    a("s_mov_b64 s[36:37], 0")
    for n in range(6):
        a(f"v_cmp_ne_u64 vcc, s[76:77], {R(G+4*n+2,2)}")
        a("s_or_b64 s[36:37], s[36:37], vcc")
    a(f"""
    s_cmp_eq_u64 s[36:37], 0
    s_cbranch_scc1 {name}_p_ok
    s_sub_u32 s38, s38, 1
    s_cmp_eq_u32 s38, 0
    s_cbranch_scc1 {name}_p_ok
    s_sleep 2
    s_branch {name}_p
    """)
    a.label(name + "_p_ok")
    stamp(a, 5)
    for n in range(1, 6):
        for i in range(2): a(f"v_add_f32 v{G+i}, v{G+i}, v{G+4*n+i}")
    inv = f32h(1.0 / 2304.0)
    a(f"""
    v_mov_b32 v{G+2}, v{G}
    v_mov_b32 v{G+3}, v{G+1}
    v_permlane32_swap_b32 v{G}, v{G+2}
    v_permlane32_swap_b32 v{G+1}, v{G+3}
    v_add_f32 v{G}, v{G}, v{G+2}
    v_add_f32 v{G+1}, v{G+1}, v{G+3}
    v_mul_f32 v{G}, {inv}, v{G}
    v_mul_f32 v{G+1}, {inv}, v{G+1}
    v_fma_f32 v{G+1}, -v{G}, v{G}, v{G+1}
    v_max_f32 v{G+1}, 0, v{G+1}
    v_add_f32 v{G+1}, {f32h(1e-5)}, v{G+1}
    v_rsq_f32 v{G+1}, v{G+1}
    v_mul_f32_e64 v{G}, -v{G}, v{G+1}
    ds_write_b32 v174, v{G} offset:2048
    ds_write_b32 v174, v{G+1} offset:2560
    s_and_b32 s36, s6, 1
    s_lshl_b32 s36, s36, 8
    s_add_u32 s36, s36, {SCR + 2048}
    v_lshl_add_u32 v4, v15, 5, s36
    s_lshl_b32 s34, s33, 7
    s_lshl_b32 s35, s32, 1
    s_add_u32 s34, s34, s35
    s_lshl_b32 s34, s34, 10
    s_waitcnt lgkmcnt(0)
    s_barrier
    """)
    AB = [(S1, S2), (112, 128)]
    for rg in range(2):
        b_, a_ = AB[rg]
        for j in range(2):
            for h in range(2):
                a(f"ds_read_b128 {R(b_+8*j+4*h,4)}, v4 offset:{rg*128+j*64+h*16}")
                a(f"ds_read_b128 {R(a_+8*j+4*h,4)}, v4 offset:{512+rg*128+j*64+h*16}")
    k = 0
    for rg in range(2):
        b_, a_ = AB[rg]
        for ct in range(3):
            c = ACC + (rg * 3 + ct) * 16
            p = 144 + (k % 3) * 8; k += 1
            for i in range(16): a(f"v_fma_f32 v{c+i}, v{c+i}, v{a_+i}, v{b_+i}")
            for i in range(8): a(f"v_cvt_pk_bf16_f32 v{p+i}, v{c+2*i}, v{c+2*i+1}")
            a(f"s_add_u32 s35, s34, {ct*128*1024 + rg*2048}")
            for j in range(2): a(f"buffer_store_dwordx4 {R(p+4*j,4)}, v1, s[40:43], s35 offen offset:{1024*j}{SC}")
    a(f"s_lshl_b32 s36, s7, 4\ns_add_u32 s36, s36, s5\ns_add_u32 s36, s36, {FL_Z2}")
    if 'fine' in EXP: stamp(a, 11)
    publish(a, 36)

def w36_setup(a, vDW, isv):
    srd(a, 20, 10, 0, 576 * 3456)
    a(f"""
    s_mul_i32 s26, s7, 288
    s_add_u32 s26, s26, {2304 if isv else 0}
    s_movk_i32 s28, 3456
    s_mul_i32 s54, s6, 2304
    s_mov_b32 s57, 0
    s_mov_b32 s52, 0xffff
    s_mov_b32 s53, 0
    s_lshl_b32 s27, s6, {3 if isv else 2}
    """)
    for j in range(3):
        a(f"""
        v_add_u32 v6, {64*j}, v0
        v_mul_u32_u24 v7, 1821, v6
        v_lshrrev_b32 v7, 16, v7
        v_mul_u32_u24 v11, 36, v7
        v_sub_u32 v6, v6, v11
        v_cmp_lt_u32 vcc, 17, v6
        v_cndmask_b32_e64 v11, 0, 1, vcc
        v_mul_u32_u24 v12, 18, v11
        v_sub_u32 v6, v6, v12
        v_add_u32 v7, s27, v7
        """)
        if isv:
            a("""
            v_lshl_add_u32 v7, v11, 2, v7
            v_mul_lo_u32 v7, v7, s28
            """)
        else:
            a("""
            v_mul_lo_u32 v7, v7, s28
            v_mul_u32_u24 v12, 1152, v11
            v_add_u32 v7, v7, v12
            """)
        a(f"""
        v_lshl_add_u32 v7, v6, 4, v7
        v_add_u32 v7, s26, v7
        v_subrev_u32 v{vDW+j}, {1024*j}, v7
        """)
def w36_dma(vDW, lds, rows):
    return [f"s_add_u32 m0, s54, {lds}"] + \
           [f"buffer_load_dwordx4 v{vDW+j}, s[20:23], s57 offen offset:{1024*j} lds" for j in range(2)] + \
           ["s_mov_b64 exec, s[52:53]", f"buffer_load_dwordx4 v{vDW+2}, s[20:23], s57 offen offset:2048 lds", "s_mov_b64 exec, -1",
            f"s_add_u32 s57, s57, {rows*3456}"]

def gen_qk(a, name):
    ACC = 16; XF = 160; WF = 168
    vX, vW, vWb, vDX, vDW = 240, 1, 2, 244, 248
    WB = 32768; WS_ = 9216
    x_dma_setup(a, vDX)
    tx, tw = {}, {}
    tx[0] = emit_mix(a, x_dma(vDX, 0), [])
    w36_setup(a, vDW, False)
    for U in range(4): tw[U] = emit_mix(a, w36_dma(vDW, WB + U * WS_, 16), [])
    tx[1] = emit_mix(a, x_dma(vDX, 16384), [])
    bulk_prefetch(a)
    x_read_setup(a, vX, 55)
    a(f"""
    v_bfe_u32 v12, v0, 2, 2
    v_lshl_add_u32 v13, v10, 3, v12
    v_mul_u32_u24 v13, 576, v13
    v_bfe_u32 v14, v0, 4, 1
    v_mul_u32_u24 v14, 288, v14
    v_add_u32 v13, v13, v14
    v_add_u32 v13, {WB}, v13
    v_and_b32 v14, 3, v0
    v_mul_u32_u24 v14, 72, v14
    v_add_u32 v{vWb}, v13, v14
    v_add_u32 v{vWb}, 32, v{vWb}
    v_and_b32 v14, 1, v0
    v_lshl_add_u32 v13, v14, 4, v13
    v_and_b32 v14, 2, v0
    v_lshl_add_u32 v{vW}, v14, 2, v13
    """)
    def reads(U):
        S, u = U // 4, U % 4
        L = [f"ds_read_b128 {R(XF+(U%2)*4,4)}, v{vX+u} offset:{(S%2)*16384}"]
        base = (U % 4) * WS_
        for h in range(9):
            for t in range(2):
                if h < 8: L.append(f"ds_read_b64_tr_b16 {R(WF+(U%2)*36+4*h+2*t,2)}, v{vW} offset:{base+t*2304+36*h+(4 if h%2 else 0)}")
                else: L.append(f"ds_read_b64_tr_b16 {R(WF+(U%2)*36+4*h+2*t,2)}, v{vWb} offset:{base+t*2304}")
        return L
    def mfmas(U):
        return [f"{M32} {R(ACC+16*h,16)}, {R(WF+(U%2)*36+4*h,4)}, {R(XF+(U%2)*4,4)}, {R(ACC+16*h,16) if U else 0}" for h in range(9)]
    a.wait_vm(tw[0]); a("s_waitcnt lgkmcnt(0)"); a("s_barrier")
    stamp(a, 2)
    for x in reads(0): a(x)
    def step(U):
        S, u = U // 4, U % 4
        if U + 1 < 36:
            a.wait_vm(tw[U + 1])
            if u == 3: a.wait_vm(tx[S + 1])
            a.wait_lds_all(); a("s_barrier")
        fill = reads(U + 1) if U + 1 < 36 else []
        mf = mfmas(U)
        ld = w36_dma(vDW, WB + (U % 4) * WS_, 16) if U + 4 < 36 else []
        xl = x_dma(vDX, (S % 2) * 16384) if (u == 3 and S + 2 < 9) else []
        groups = []
        cur = []
        for x in ld + xl:
            cur.append(x)
            if x.endswith(" lds"): groups.append(cur); cur = []
            elif x.startswith("s_mov_b64 exec, -1") or x.startswith("s_add_u32 s5"): groups[-1] += cur; cur = []
        t = None
        gi = [1, 4, 7] if not xl else [0, 1, 2, 4, 5, 6, 7]
        for i, m in enumerate(mf):
            a(m)
            for x in fill[3 * i:3 * i + 3]: a(x)
            if i in gi and groups:
                for x in groups.pop(0):
                    tk = a(x)
                    if x.endswith(" lds"):
                        if "s[20:23]" in x: tw[U + 4] = tk
                        else: t = tk
        assert not groups
        if t is not None: tx[S + 2] = t
    step(0)
    def body(it):
        for U in range(1 + 8 * it, 9 + 8 * it): step(U)
    a.roll(body, 4, "s65", name + "_l")
    for U in range(33, 36): step(U)
    stamp(a, 3)
    NON = 240
    nonce_sample(a, NON)
    srd(a, 40, 14, WS_QA, WS_GATE - WS_QA)
    srd(a, 44, 14, WS_KV, KV_BYTES)
    a(f"""
    s_lshl_b32 s32, s5, 2
    s_add_u32 s32, s32, s6
    s_lshl_b32 s33, s7, 9
    s_add_u32 s33, s33, s32
    s_lshl_b32 s34, s33, 10
    s_mul_i32 s35, s33, {KV_TILE}
    s_lshl_b32 s36, s33, 7
    s_add_u32 s36, s36, {WS_QB - WS_QA}
    s_add_u32 s37, s35, {KV_KB}
    v_lshlrev_b32 v1, 9, v15
    v_lshl_add_u32 v1, v9, 4, v1
    v_lshlrev_b32 v2, 4, v0
    v_lshlrev_b32 v3, 14, v15
    v_lshl_add_u32 v3, v9, 2, v3
    s_mov_b32 s38, {2*64*KV_TILE}
    v_mul_lo_u32 v4, v15, s38
    v_lshl_add_u32 v4, v8, 2, v4
    v_mov_b32 v6, {f32h(CQ)}
    """)
    for h in range(9):
        c = ACC + 16 * h
        p = WF + (h % 4) * 8
        for i in range(8): a(f"v_mul_f32 v{c+i}, v6, v{c+i}")
        for i in range(8): a(f"v_cvt_pk_bf16_f32 v{p+i}, v{c+2*i}, v{c+2*i+1}")
        if h < 8:
            a(f"buffer_store_dwordx4 {R(p,4)}, v1, s[40:43], s34 offen{SC}")
            a(f"buffer_store_dwordx4 {R(p+4,4)}, v2, s[44:47], s35 offen{SC}")
            a(f"s_add_u32 s34, s34, {64*1024}\ns_add_u32 s35, s35, {64*KV_TILE}")
        else:
            for aa in range(2):
                for eo in range(2):
                    hh = 4 * aa + eo
                    a(f"s_add_u32 s38, s36, {hh*8192}\ns_add_u32 s39, s37, {hh*64*KV_TILE}")
                    a(f"buffer_store_dword v{p+2*aa+eo}, v3, s[40:43], s38 offen{SC}")
                    a(f"buffer_store_dword v{p+4+2*aa+eo}, v4, s[44:47], s39 offen{SC}")
    nonce_get(a, name + "_n", NON)
    a(f"s_lshl_b32 s36, s7, 4\ns_add_u32 s36, s36, s5\ns_add_u32 s36, s36, {FL_QK}")
    publish(a, 36)
    spat_setup(a)

def gen_pf(a, name):
    if 'nopf4' in EXP: return
    srd(a, 40, 68, 0, 2304 * 1152)
    srd(a, 44, 66, 0, 576 * 1152)
    a(f"""
    s_lshr_b32 s30, s4, 2
    s_lshl_b32 s30, s30, 3
    s_add_u32 s30, s30, s3
    s_lshl_b32 s30, s30, 2
    s_add_u32 s30, s30, s6
    s_lshl_b32 s31, s30, 10
    s_lshl_b32 s30, s30, 15
    v_lshrrev_b32 v5, 3, v0
    v_and_b32 v6, 7, v0
    v_lshlrev_b32 v5, 12, v5
    v_lshl_add_u32 v5, v6, 4, v5
    """)
    L = [f"buffer_load_dwordx4 v[16:19], v5, s[20:23], s30 offen offset:{128*j} ;nowaw" for j in range(3, 32)]
    if 'pf2' not in EXP:
        for j in range(11): L.append(f"s_add_u32 s32, s31, {j*256*1024}\nbuffer_load_dwordx4 v[16:19], v1, s[40:43], s32 offen ;nowaw")
        for j in range(3): L.append(f"s_add_u32 s32, s31, {j*256*1024}\nbuffer_load_dwordx4 v[16:19], v1, s[44:47], s32 offen ;nowaw")
    for x in L: a(x)
    a("s_waitcnt vmcnt(0)")

def gen_v(a, name):
    ACC = 16; WF = 104; XF = 160
    vX, vW, vG, vDX, vDW = 144, 148, 149, 150, 154
    WB = 32768; WS_ = 9216; GB = 79872; SL = 0
    a(f"s_setprio {envi('VPRIO', 1)}")
    x_dma_setup(a, vDX)
    tx, tw = {}, {}
    tx[0] = emit_mix(a, x_dma(vDX, 0), [])
    w36_setup(a, vDW, True)
    srd(a, 48, 66, 0, 1152)
    a(f"""
    v_lshlrev_b32 v2, 4, v0
    s_mov_b32 m0, {GB}
    buffer_load_dwordx4 v2, s[48:51], 0 offen lds
    buffer_load_dwordx4 v2, s[48:51], 0 offen offset:1024 lds
    """)
    for H in range(2): tw[H] = emit_mix(a, w36_dma(vDW, WB + H * WS_, 32), [])
    qk_prefetch(a, 244)
    tx[1] = emit_mix(a, x_dma(vDX, 16384), [])
    for H in range(2, 4): tw[H] = emit_mix(a, w36_dma(vDW, WB + H * WS_, 32), [])
    bulk_prefetch(a)
    x_read_setup(a, vX, 55)
    a(f"""
    v_bfe_u32 v12, v0, 2, 2
    v_lshl_add_u32 v13, v10, 2, v12
    v_mul_u32_u24 v13, 576, v13
    v_and_b32 v14, 16, v0
    v_lshl_add_u32 v13, v14, 1, v13
    v_and_b32 v14, 3, v0
    v_lshl_add_u32 v13, v14, 3, v13
    v_add_u32 v{vW}, {WB}, v13
    v_lshlrev_b32 v{vG}, 4, v10
    v_add_u32 v{vG}, {GB}, v{vG}
    s_waitcnt lgkmcnt(0)
    s_mov_b32 s60, 0xffff0000
    s_mov_b32 s61, 0xffff0000
    """)
    def reads(U):
        S, u = U // 4, U % 4; H, up = U // 2, U % 2
        L = []
        if u == 0: L += [f"ds_read_b128 {R(XF+(S%2)*16+4*k,4)}, v{vX+k} offset:{(S%2)*16384}" for k in range(2)]
        if u == 1: L += [f"ds_read_b128 {R(XF+(S%2)*16+4*k,4)}, v{vX+k} offset:{(S%2)*16384}" for k in range(2, 4)]
        for T in range(5):
            for t in range(2):
                L.append(f"ds_read_b64_tr_b16 {R(WF+(U%2)*20+4*T+2*t,2)}, v{vW} offset:{(H%4)*WS_+up*4608+t*288+T*64}")
        L += ["s_mov_b64 exec, s[60:61]", f"ds_read_b128 {R(WF+(U%2)*20+16,4)}, v{vG} offset:{(U%8)*32} ;nowaw", "s_mov_b64 exec, -1"]
        if U % 8 == 7: L.append(f"v_add_u32 v{vG}, 256, v{vG}")
        return L
    def mfmas(U):
        S, u = U // 4, U % 4
        return [f"{M32} {R(ACC+16*T,16)}, {R(XF+(S%2)*16+4*u,4)}, {R(WF+(U%2)*20+4*T,4)}, {R(ACC+16*T,16) if U else 0}" for T in range(5)]
    a.wait_vm(tw[0]); a("s_waitcnt lgkmcnt(0)"); a("s_barrier")
    stamp(a, 2)
    for x in reads(0): a(x)
    def step(U):
        S, u = U // 4, U % 4; H, up = U // 2, U % 2
        ld = []; key = None
        if up == 1 and H + 1 < 18:
            a.wait_vm(tw[H + 1])
            if u == 3: a.wait_vm(tx[S + 1])
            a.wait_lds_all(); a("s_barrier")
            if H + 4 < 18: ld = w36_dma(vDW, WB + (H % 4) * WS_, 32); key = (tw, H + 4)
        if u == 2 and S + 2 < 9:
            ld = x_dma(vDX, (S % 2) * 16384); key = (tx, S + 2)
        fill = reads(U + 1) if U + 1 < 36 else []
        t = emit_mix(a, mfmas(U), fill[:4] + ld + fill[4:])
        if key: key[0][key[1]] = t
    step(0)
    def body(it):
        for U in range(1 + 8 * it, 9 + 8 * it): step(U)
    a.roll(body, 4, "s65", name + "_l")
    for U in range(33, 36): step(U)
    stamp(a, 3)
    a(f"""
    v_mov_b32 v252, 0
    s_mov_b32 s70, 0x7ff00000
    s_lshl_b32 s71, s5, 4
    s_add_u32 s71, s71, s7
    s_add_u32 s71, s71, {FL_Z1 + 12}
    """)
    NON = 240
    nonce_sample(a, NON)
    srd(a, 44, 14, WS_KV, KV_BYTES)
    srd(a, 40, 14, WS_GATE, 32768)
    a(f"""
    s_lshl_b32 s32, s5, 2
    s_add_u32 s32, s32, s6
    s_lshl_b32 s33, s7, 9
    s_add_u32 s33, s33, s32
    s_mul_i32 s35, s33, {KV_TILE}
    s_add_u32 s35, s35, {KV_V}
    s_mul_i32 s36, s6, 10368
    s_add_u32 s36, s36, {SL}
    v_mul_u32_u24 v5, {KV_VR}, v15
    v_add_u32 v5, s36, v5
    """)
    for T in range(5):
        c = ACC + 16 * T
        p = WF + (T % 4) * 8
        a(f"""
        v_add_u32 v1, {32*T}, v8
        v_mul_u32_u24 v2, 3641, v1
        v_lshrrev_b32 v2, 16, v2
        v_mul_u32_u24 v3, 18, v2
        v_sub_u32 v3, v1, v3
        """)
        if T == 4:
            a("""
            v_cmp_lt_u32 vcc, 15, v8
            v_and_b32 v4, 7, v8
            v_cndmask_b32 v2, v2, v4, vcc
            v_lshrrev_b32 v4, 3, v8
            v_add_u32 v4, 16, v4
            v_cndmask_b32 v3, v3, v4, vcc
            """)
        a(f"""
        v_mul_u32_u24 v2, 1280, v2
        v_lshl_add_u32 v2, v3, 4, v2
        v_add_u32 v{150+T}, v2, v5
        """)
        for i in range(8): a(f"v_cvt_pk_bf16_f32 v{p+i}, v{c+2*i}, v{c+2*i+1}")
        if T == 4:
            a("""
            v_cmp_lt_u32 s[62:63], 23, v8
            v_mov_b32 v4, 0x3f803f80
            v_cndmask_b32 v4, v4, 0, s[62:63]
            """)
            for i in range(8): a(f"v_cndmask_b32 v{p+i}, v{p+i}, v4, vcc")
        for j in range(2): a(f"ds_write_b128 v{150+T}, {R(p+4*j,4)} offset:{2*KV_VR*j}")
    c = ACC + 64
    for r in range(16): a(f"v_mul_f32 v{c+r}, {f32h(-LOG2E)}, v{c+r}")
    for r in range(16): a(f"v_exp_f32 v{c+r}, v{c+r}")
    for r in range(16): a(f"v_add_f32 v{c+r}, 1.0, v{c+r}")
    for r in range(16): a(f"v_rcp_f32 v{c+r}, v{c+r}")
    a(f"""
    v_lshlrev_b32 v1, 5, v15
    v_add_u32 v1, s36, v1
    s_mov_b32 s60, 0x10000
    s_mov_b32 s61, 0x10000
    s_mov_b64 exec, s[60:61]
    """)
    for j in range(2):
        for h in range(2):
            a(f"ds_write_b128 v1, {R(c+8*j+4*h,4)} offset:{10240+64*j+16*h}")
    a(f"""
    s_mov_b64 exec, -1
    v_lshlrev_b32 v1, 4, v0
    v_add_u32 v1, s36, v1
    v_lshlrev_b32 v2, 2, v8
    v_add_u32 v3, s36, v2
    v_lshl_add_u32 v2, v15, 30, v2
    s_mov_b32 s38, {64*KV_TILE - 1280}
    s_lshl_b32 s37, s7, 13
    s_lshl_b32 s39, s32, 7
    s_add_u32 s37, s37, s39
    s_waitcnt lgkmcnt(0)
    ds_read_b32 v160, v3 offset:10240
    """)
    for i in range(10): a(f"ds_read_b128 {R(164+4*i,4)}, v1 offset:{1024*i}")
    a(f"buffer_store_dword v160, v2, s[40:43], s37 offen{SC}")
    for i in range(10):
        a(f"""
        v_add_u32 v4, {64*i}, v0
        v_mul_u32_u24 v5, 820, v4
        v_lshrrev_b32 v5, 16, v5
        v_mul_lo_u32 v5, v5, s38
        v_lshl_add_u32 v{204+i}, v4, 4, v5
        """)
        a(f"buffer_store_dwordx4 {R(164+4*i,4)}, v{204+i}, s[44:47], s35 offen{SC}")
    nonce_get(a, name + "_n", NON)
    a(f"s_lshl_b32 s36, s7, 4\ns_add_u32 s36, s36, s5\ns_add_u32 s36, s36, {FL_V}")
    publish(a, 36)

exec(open(os.path.join(os.path.dirname(os.path.abspath(__file__)), "kf2.py")).read())
```

```python
from asmlib import *
from layout import *
import os, math, struct
EXP = os.environ.get('KEXP', '')
def envi(k, d): return int(os.environ.get(k, str(d)))

def f32h(x): return "0x%08x" % struct.unpack("<I", struct.pack("<f", x))[0]
LOG2E = math.log2(math.e)
GC1 = -2.0 * math.sqrt(2.0 / math.pi) * LOG2E
GC2 = GC1 * 0.044715
CQ = LOG2E / math.sqrt(18.0)
M32 = "v_mfma_f32_32x32x16_bf16"
M16 = "v_mfma_f32_16x16x32_bf16"
SC = " sc0 sc1"
KN = 'sf_kernel'
def R(b, n): return f"v[{b}:{b+n-1}]"

def srd(a, d, ptr, off, nbytes):
    a(f"""
    s_add_u32 s{d}, s{ptr}, {off}
    s_addc_u32 s{d+1}, s{ptr+1}, 0
    s_mov_b32 s{d+2}, {nbytes}
    s_mov_b32 s{d+3}, 0x00020000
    """)

def vpi(a, d, s, t):
    a(f"""
    v_and_b32 v{d}, 0x33, v{s}
    v_and_b32 v{t}, 4, v{s}
    v_lshl_or_b32 v{d}, v{t}, 1, v{d}
    v_and_b32 v{t}, 8, v{s}
    v_lshrrev_b32 v{t}, 1, v{t}
    v_or_b32 v{d}, v{d}, v{t}
    """)

def emit_mix(a, mf, fill):
    seq = []
    n, m = len(mf), len(fill); k = 0
    for i, x in enumerate(mf):
        seq.append(x)
        tgt = min(m, (i + 1) * m // max(1, n - 1)) if n > 1 else m
        while k < tgt or (0 < k < m and (fill[k-1].startswith("s_mov_b64 exec, s") or fill[k].startswith("s_mov_b64 exec, -1"))):
            seq.append(fill[k]); k += 1
    seq += fill[k:]
    last = None
    for x in seq:
        t = a(x)
        if x.endswith(" lds"): last = t
    return last

def nonce_sample(a, v):
    srd(a, 48, 68, 0, 256)
    a(f"v_mov_b32 v{v+2}, 0\nbuffer_load_dwordx2 {R(v,2)}, v{v+2}, s[48:51], 0 offen{SC}")
def nonce_get(a, lbl, v):
    a(f"v_cmp_ne_u32 vcc, 0, v{v}")
    a(f"s_cbranch_vccnz {lbl}_ok")
    saved = list(a.vm)
    a("s_mov_b32 s38, 0x40000")
    a.label(lbl)
    a(f"""
    buffer_load_dwordx2 {R(v,2)}, v{v+2}, s[48:51], 0 offen{SC}
    s_waitcnt vmcnt(0)
    v_cmp_ne_u32 vcc, 0, v{v}
    s_sub_u32 s38, s38, 1
    s_cbranch_vccnz {lbl}_ok
    s_cmp_lg_u32 s38, 0
    s_cbranch_scc1 {lbl}
    """)
    a.label(lbl + "_ok")
    a.vm = saved
    a(f"v_readfirstlane_b32 s76, v{v}\nv_readfirstlane_b32 s77, v{v+1}")
def publish(a, line_sgpr, tok=None):
    a(f"""
    s_lshl_b32 s39, s{line_sgpr}, 7
    s_lshl_b32 s38, s6, 6
    v_add_lshl_u32 v10, v0, s38, 20
    v_mov_b32 v12, s76
    v_mov_b32 v13, s77
    """)
    if tok is None: a("s_waitcnt vmcnt(0)")
    else: a.wait_vm(tok)
    a.wait_lds_all()
    a("s_barrier")
    a(f"buffer_store_dwordx2 v[12:13], v10, s[72:75], s39 offen{SC}")
def flag_sample(vdst, voff): return f"buffer_load_dwordx2 {R(vdst,2)}, v{voff}, s[72:75], 0 offen{SC}"
def poll(a, lbl, voff, vt, pre=False, sleep=4):
    if pre:
        a(f"v_cmp_ne_u64 vcc, s[76:77], {R(vt,2)}")
        a(f"s_cbranch_vccz {lbl}_ok")
    saved = list(a.vm)
    a("s_mov_b32 s38, 0x40000")
    a.label(lbl)
    a(f"""
    {flag_sample(vt, voff)}
    s_waitcnt vmcnt(0)
    v_cmp_ne_u64 vcc, s[76:77], {R(vt,2)}
    s_sub_u32 s38, s38, 1
    s_cbranch_vccz {lbl}_ok
    s_cmp_eq_u32 s38, 0
    s_cbranch_scc1 {lbl}_ok
    s_sleep {sleep}
    s_branch {lbl}
    """)
    a.label(lbl + "_ok")
    if pre: a.vm = saved
def poll_wg(a, lbl, voff, vt, sleep=4):
    saved = list(a.vm)
    a(f"s_cmp_lg_u32 s6, 0\ns_cbranch_scc1 {lbl}_ok")
    poll(a, lbl, voff, vt, sleep=sleep)
    a.vm = saved
    a("s_barrier")

GO = 'go' in EXP.split(',')
def go_signal():
    return ["s_and_b32 s39, s2, 255", "s_lshl_b32 s39, s39, 7", "s_lshl_b32 s38, s6, 6", "v_add_lshl_u32 v10, v0, s38, 20",
            "v_mov_b32 v12, s76", "v_mov_b32 v13, s77", f"buffer_store_dwordx2 v[12:13], v10, s[72:75], s39 offen{SC}"]
def go_wait(a, name):
    nonce_sample(a, 20)
    nonce_get(a, name + "_n", 20)
    a("s_lshl_b32 s39, s2, 7\nv_mov_b32 v23, s39")
    poll_wg(a, name + "_go", 23, 24, sleep=4)

def x_dma_setup(a, vDX):
    srd(a, 16, 8, 0, 2048 * 1152)
    a(f"""
    s_lshl_b32 s26, s5, 7
    s_lshl_b32 s27, s6, 5
    s_add_u32 s26, s26, s27
    v_lshrrev_b32 v4, 3, v0
    v_and_b32 v5, 7, v0
    s_lshl_b32 s55, s6, 12
    s_mov_b32 s56, 0
    s_movk_i32 s28, 1152
    """)
    for j in range(4):
        a(f"""
        v_add_u32 v6, {8*j}, v4
        v_bfe_u32 v7, v6, 1, 3
        v_xor_b32 v7, v7, v5
        v_add_u32 v6, s26, v6
        v_mul_lo_u32 v6, v6, s28
        v_lshl_add_u32 v6, v7, 4, v6
        v_subrev_u32 v{vDX+j}, {1024*j}, v6
        """)
def x_dma(vDX, lds):
    return [f"s_add_u32 m0, s55, {lds}"] + \
           [f"buffer_load_dwordx4 v{vDX+j}, s[16:19], s56 offen offset:{1024*j} lds" for j in range(4)] + ["s_add_u32 s56, s56, 128"]
def x_read_setup(a, vX, rowbase_sgpr):
    a("v_and_b32 v8, 31, v0")
    vpi(a, 9, 8, 10)
    a(f"""
    v_lshrrev_b32 v10, 5, v0
    v_bfe_u32 v11, v9, 1, 3
    v_xor_b32 v11, v11, v10
    v_lshlrev_b32 v11, 4, v11
    v_lshl_add_u32 v11, v9, 7, v11
    v_add_u32 v{vX}, s{rowbase_sgpr}, v11
    v_xor_b32 v{vX+1}, 32, v{vX}
    v_xor_b32 v{vX+2}, 64, v{vX}
    v_xor_b32 v{vX+3}, 96, v{vX}
    v_mov_b32 v15, v10
    """)

def qk_prefetch(a, vt):
    if 'qkpf' not in EXP: return
    a(f"""
    s_lshr_b32 s25, s4, 2
    s_lshl_b32 s25, s25, 2
    s_add_u32 s25, s25, s6
    s_lshl_b32 s25, s25, 6
    s_mul_i32 s29, s7, 288
    s_add_u32 s29, s29, 28
    """)
    for j in range(2):
        a(f"""
        v_add_u32 v{vt}, s25, v0
        v_add_u32 v{vt}, {2048*j}, v{vt}
        v_mul_u32_u24 v{vt+1}, 10923, v{vt}
        v_lshrrev_b32 v{vt+1}, 16, v{vt+1}
        v_mul_u32_u24 v{vt+2}, 6, v{vt+1}
        v_sub_u32 v{vt}, v{vt}, v{vt+2}
        v_mul_lo_u32 v{vt+1}, v{vt+1}, s28
        v_lshl_add_u32 v{vt+1}, v{vt}, 7, v{vt+1}
        v_cmp_lt_u32 vcc, 2, v{vt}
        v_mov_b32 v{vt+2}, {1152-384}
        v_cndmask_b32 v{vt+2}, 0, v{vt+2}, vcc
        v_add_u32 v{vt+1}, v{vt+1}, v{vt+2}
        buffer_load_dword v{vt+3+j}, v{vt+1}, s[20:23], s29 offen
        """)

def gelu(a, regs, T, cv):
    for g in range(0, len(regs), 8):
        grp = regs[g:g + 8]
        for k, r in enumerate(grp): a(f"v_mul_f32 v{T+k}, v{r}, v{r}")
        for k, r in enumerate(grp): a(f"v_fmaak_f32 v{T+k}, v{T+k}, v{cv}, {f32h(GC1)}")
        for k, r in enumerate(grp): a(f"v_mul_f32 v{T+k}, v{T+k}, v{r}")
        for k, r in enumerate(grp): a(f"v_exp_f32 v{T+k}, v{T+k}")
        for k, r in enumerate(grp): a(f"v_add_f32 v{T+k}, 1.0, v{T+k}")
        for k, r in enumerate(grp): a(f"v_rcp_f32 v{T+k}, v{T+k}")
        for k, r in enumerate(grp): a(f"v_mul_f32 v{r}, v{r}, v{T+k}")

def bulk_prefetch(a):
    if 'nobpf' in EXP: return
    srd(a, 40, 12, 0, 576 * 9216)
    srd(a, 44, 10, 0, 576 * 3456)
    a(f"""
    s_lshl_b32 s25, s2, 2
    s_add_u32 s25, s25, s6
    s_lshl_b32 s25, s25, 10
    s_add_u32 s26, s25, {2048*1024}
    s_add_u32 s27, s25, {4096*1024}
    v_lshlrev_b32 v3, 4, v0
    buffer_load_dwordx4 v[252:255], v3, s[16:19], s25 offen ;nowaw
    buffer_load_dwordx4 v[252:255], v3, s[40:43], s25 offen ;nowaw
    buffer_load_dwordx4 v[252:255], v3, s[44:47], s25 offen ;nowaw
    buffer_load_dwordx4 v[252:255], v3, s[40:43], s26 offen ;nowaw
    buffer_load_dwordx4 v[252:255], v3, s[16:19], s26 offen ;nowaw
    buffer_load_dwordx4 v[252:255], v3, s[40:43], s27 offen ;nowaw
    """)

WB_ = 32768
def gen_z(a, name, is2, nun=3):
    ACC = 16
    RING = 3 if nun == 4 else 4
    WSL = 4096 * nun
    if nun == 4:
        XF, WF, vX, vW, vDX, vDW = 144, 208, 240, 244, 246, 250
        T = 144; CV = 152; NON = 154; PK = 160
    else:
        XF, WF, vX, vW, vDX, vDW = 112, 176, 216, 220, 224, 228
        T = 160; CV = 168; NON = 170; PK = 112
    if not is2: a(f"s_setprio {envi('Z1P', 0)}")
    x_dma_setup(a, vDX)
    srd(a, 20, 12, 0, 576 * 9216)
    a(f"""
    s_lshl_b32 s26, s64, 7
    s_add_u32 s26, s26, {4608 if is2 else 0}
    s_lshl_b32 s27, s6, 3
    s_movk_i32 s28, 9216
    v_lshlrev_b32 v6, 1, v4
    v_and_b32 v6, 4, v6
    v_xor_b32 v6, v6, v5
    v_lshlrev_b32 v6, 4, v6
    v_add_u32 v6, s26, v6
    v_add_u32 v7, s27, v4
    v_mul_lo_u32 v7, v7, s28
    v_add_u32 v{vDW}, v7, v6
    s_lshl_b32 s54, s6, 10
    s_add_u32 s54, s54, {WB_}
    s_mov_b32 s57, 0
    """)
    def wl(H):
        L = []
        for un in range(nun):
            L.append(f"s_add_u32 m0, s54, {(H%RING)*WSL + un*4096 - un*128}")
            L.append(f"buffer_load_dwordx4 v{vDW}, s[20:23], s57 offen offset:{un*128} lds")
        L.append(f"s_add_u32 s57, s57, {32*9216}")
        return L
    tx, tw = {}, {}
    if GO and not is2:
        bulk_prefetch(a)
        go_wait(a, name)
    tx[0] = emit_mix(a, x_dma(vDX, 0), [])
    tw[0] = emit_mix(a, wl(0), []); tw[1] = emit_mix(a, wl(1), [])
    tx[1] = emit_mix(a, x_dma(vDX, 16384), [])
    for H in range(2, RING): tw[H] = emit_mix(a, wl(H), [])
    if GO and is2: nonce_sample(a, 232)
    if not (GO and not is2): bulk_prefetch(a)
    a("s_and_b32 s29, s6, 1\ns_lshl_b32 s29, s29, 13")
    x_read_setup(a, vX, 29)
    a(f"""
    v_bfe_u32 v12, v0, 2, 2
    v_lshl_add_u32 v13, v10, 3, v12
    v_lshlrev_b32 v13, 7, v13
    v_and_b32 v14, 2, v12
    v_lshl_add_u32 v13, v14, 5, v13
    v_and_b32 v14, 16, v0
    v_lshl_add_u32 v13, v14, 1, v13
    v_and_b32 v14, 1, v0
    v_lshl_add_u32 v13, v14, 4, v13
    v_and_b32 v14, 2, v0
    v_lshl_add_u32 v13, v14, 2, v13
    s_lshr_b32 s30, s6, 1
    s_mul_i32 s31, s30, {nun}
    """)
    for ct in range(min(nun, 2) if nun == 4 else nun):
        a(f"""
        s_add_u32 s32, s31, {ct}
        s_and_b32 s33, s32, 1
        s_lshl_b32 s33, s33, 6
        s_lshr_b32 s32, s32, 1
        s_lshl_b32 s32, s32, 12
        s_add_u32 s32, s32, {WB_}
        v_xor_b32 v14, s33, v13
        v_add_u32 v{vW+ct}, s32, v14
        """)
    def wbase(ct): return (vW + ct % 2, (ct // 2) * 4096) if nun == 4 else (vW + ct, 0)
    def xreads(S, us):
        return [f"ds_read_b128 {R(XF+(S%2)*32+(u*2+rg)*4,4)}, v{vX+u} offset:{(S%2)*16384+rg*4096}" for u in us for rg in range(2)]
    def reads(U):
        S, u = U // 4, U % 4; H, up = U // 2, U % 2
        L = []
        if u == 0: L += xreads(S, [0])
        for ct in range(nun):
            r, o = wbase(ct)
            for t in range(2):
                L.append(f"ds_read_b64_tr_b16 {R(WF+(U%2)*4*nun+4*ct+2*t,2)}, v{r} offset:{(H%RING)*WSL+o+up*2048+t*512}")
        if u == 0: L += xreads(S, [1])
        if u == 1: L += xreads(S, [2, 3])
        return L
    def mfmas(U):
        S, u = U // 4, U % 4
        L = []
        for ct in range(nun):
            for rg in range(2):
                c = ACC + (rg * nun + ct) * 16
                xf, wf = R(XF + (S % 2) * 32 + (u * 2 + rg) * 4, 4), R(WF + (U % 2) * 4 * nun + 4 * ct, 4)
                A, B = (xf, wf) if is2 else (wf, xf)
                L.append(f"{M32} {R(c,16)}, {A}, {B}, {R(c,16) if U else 0}")
        return L
    a.wait_vm(tw[0]); a("s_waitcnt lgkmcnt(0)"); a("s_barrier")
    stamp(a, 2)
    for x in reads(0): a(x)
    def step(U):
        S, u = U // 4, U % 4; H, up = U // 2, U % 2
        ld = []; key = None
        if up == 1 and H + 1 < 18:
            a.wait_vm(tw[H + 1])
            if u == 3: a.wait_vm(tx[S + 1])
            a.wait_lds_all(); a("s_barrier")
            if H + RING < 18: ld = wl(H + RING); key = (tw, H + RING)
        if u == 2 and S + 2 < 9:
            ld = x_dma(vDX, (S % 2) * 16384); key = (tx, S + 2)
        fill = reads(U + 1) if U + 1 < 36 else []
        if GO and is2 and U == envi("GOU", 8):
            nonce_get(a, name + "_n", 232)
            fill = fill + go_signal()
        t = emit_mix(a, mfmas(U), fill[:4] + ld + fill[4:])
        if key: key[0][key[1]] = t
    step(0)
    def body(it):
        for U in range(1 + 8 * it, 9 + 8 * it): step(U)
    a.roll(body, 4, "s65", name + "_l")
    for U in range(33, 36): step(U)
    stamp(a, 3)
    a(f"""
    s_and_b32 s29, s6, 1
    s_lshl_b32 s32, s5, 2
    s_lshl_b32 s33, s29, 1
    s_add_u32 s32, s32, s33
    s_lshl_b32 s33, s64, 1
    s_add_u32 s33, s33, s31
    s_nop 7
    """)
    if not GO: nonce_sample(a, NON)
    a(f"v_mov_b32 v{CV}, {f32h(GC2)}")
    if not is2:
        a("s_setprio 0")
        srd(a, 60, 14, WS_Z1, Z_BYTES)
        a(f"""
        v_lshlrev_b32 v1, 9, v15
        v_lshl_add_u32 v252, v9, 4, v1
        s_mul_i32 s34, s32, 72
        s_add_u32 s34, s34, s33
        s_lshl_b32 s34, s34, 11
        s_lshl_b32 s71, s5, 4
        s_add_u32 s71, s71, s7
        s_add_u32 s71, s71, {FL_Z1}
        """)
        a("s_add_u32 s70, s34, 2048" if nun == 4 else "s_mov_b32 s70, 0x7ff00000")
        for rg in range(2):
            c = ACC + rg * nun * 16
            gelu(a, list(range(c, c + 16)), T, CV)
            for i in range(8): a(f"v_cvt_pk_bf16_f32 v{PK+8*rg+i}, v{c+2*i}, v{c+2*i+1}")
            a(f"s_add_u32 s35, s34, {rg*72*2048}")
            for j in range(2): a(f"buffer_store_dwordx4 {R(PK+8*rg+4*j,4)}, v252, s[60:63], s35 offen offset:{1024*j}{SC}")
        if nun == 4:
            for k in range(6):
                c = ACC + ((k // 3) * 4 + 1 + k % 3) * 16
                gelu(a, list(range(c, c + 16)), T, CV)
                for i in range(8): a(f"v_cvt_pk_bf16_f32 v{200+8*k+i}, v{c+2*i}, v{c+2*i+1}")
        if not GO: nonce_get(a, name + "_n", NON)
        a("s_barrier")
        return
    srd(a, 44, 14, WS_STAT, 16 * 12 * 2048)
    S1, S2 = 176, 192
    SCR = 73728
    a(f"""
    v_bfe_u32 v1, v0, 4, 1
    v_lshlrev_b32 v1, 9, v1
    v_lshl_add_u32 v1, v15, 5, v1
    v_bfe_u32 v2, v0, 3, 1
    v_lshl_add_u32 v1, v2, 6, v1
    v_bfe_u32 v2, v0, 2, 1
    v_lshl_add_u32 v1, v2, 4, v1
    s_lshl_b32 s35, s30, 10
    s_lshl_b32 s36, s29, 8
    s_add_u32 s35, s35, s36
    s_add_u32 s35, s35, {SCR}
    v_add_u32 v1, s35, v1
    """)
    a(f"s_setprio {envi('ZG', 2)}")
    fil = None
    if 'pf5' in EXP:
        a("""
        s_load_dwordx2 s[8:9], s[0:1], 40
        s_load_dwordx2 s[10:11], s[0:1], 56
        s_load_dwordx2 s[12:13], s[0:1], 16
        """)
        srd(a, 16, 8, 0, 2048 * 4096)
        srd(a, 20, 10, 0, 2304 * 1152)
        srd(a, 40, 12, 0, 576 * 1152)
        a(f"""
        s_mul_i32 s36, s5, 12
        s_add_u32 s36, s36, s7
        s_lshl_b32 s36, s36, 2
        s_add_u32 s36, s36, s6
        s_lshl_b32 s36, s36, 10
        v_lshlrev_b32 v3, 4, v0
        """)
        L = [(16, j) for j in range(11)] + [(20, j) for j in range(4)] + [(40, 0)]
        L = [[f"s_add_u32 s37, s36, {j*768*1024}", f"buffer_load_dwordx4 v[252:255], v3, s[{r}:{r+3}], s37 offen ;nowaw"] for r, j in L]
        fil = [L[2 * g] + L[2 * g + 1] for g in range(8)] + [[]] * 4
    for rg in range(2):
        for ct in range(3):
            c = ACC + (rg * 3 + ct) * 16
            gelu(a, list(range(c, c + 16)), T, CV, fil)
            for i in range(16):
                if ct == 0:
                    a(f"v_mul_f32 v{S2+i}, v{c+i}, v{c+i}")
                else:
                    a(f"v_fmac_f32 v{S2+i}, v{c+i}, v{c+i}")
                    a(f"v_add_f32 v{S1+i}, v{c+i}, v{S1+i if ct == 2 else c-16+i}")
        for q in range(16): a(f"v_permlane16_swap_b32 v{S1+q}, v{S2+q}")
        for q in range(16): a(f"v_add_f32 v{S1+q}, v{S1+q}, v{S2+q}")
        for q in range(8):
            a(f"v_add_f32_dpp v{S2+q}, v{S1+q}, v{S1+q} row_ror:8 row_mask:0xf bank_mask:0x3")
            a(f"v_add_f32_dpp v{S2+q}, v{S1+q+8}, v{S1+q+8} row_ror:8 row_mask:0xf bank_mask:0xc")
        o = XF + 4 * rg
        for q in range(4):
            a(f"v_add_f32_dpp v{o+q}, v{S2+q}, v{S2+q} row_half_mirror row_mask:0xf bank_mask:0x5")
            a(f"v_add_f32_dpp v{o+q}, v{S2+q+4}, v{S2+q+4} row_half_mirror row_mask:0xf bank_mask:0xa")
        for q in range(4): a(f"v_add_f32_dpp v{o+q}, v{o+q}, v{o+q} quad_perm:[1,0,3,2] row_mask:0xf bank_mask:0xf")
        for q in range(4): a(f"v_add_f32_dpp v{o+q}, v{o+q}, v{o+q} quad_perm:[2,3,0,1] row_mask:0xf bank_mask:0xf")
        a(f"ds_write_b128 v1, {R(o,4)} offset:{rg*128}")
    a("s_setprio 2")
    if not GO: nonce_get(a, name + "_n", NON)
    LB = 112
    a(f"""
    s_lshl_b32 s36, s6, 7
    s_add_u32 s36, s36, {SCR}
    v_lshl_add_u32 v2, v8, 2, s36
    s_mul_i32 s34, s5, 12
    s_add_u32 s35, s34, s7
    s_lshl_b32 s35, s35, 11
    s_lshl_b32 s37, s6, 9
    s_add_u32 s35, s35, s37
    s_lshl_b32 s34, s34, 11
    s_add_u32 s34, s34, s37
    v_lshlrev_b32 v3, 4, v8
    v_lshl_add_u32 v4, v15, 30, v3
    v_lshl_add_u32 v3, v15, 11, v3
    v_mov_b32 v{LB+2}, s76
    v_mov_b32 v{LB+3}, s77
    s_waitcnt lgkmcnt(0)
    s_barrier
    ds_read_b32 v{LB}, v2
    ds_read_b32 v{LB+1}, v2 offset:512
    ds_read_b32 v{LB+4}, v2 offset:1024
    ds_read_b32 v{LB+5}, v2 offset:1536
    v_add_f32 v{LB}, v{LB}, v{LB+4}
    v_add_f32 v{LB+1}, v{LB+1}, v{LB+5}
    buffer_store_dwordx4 {R(LB,4)}, v4, s[44:47], s35 offen{SC}
    v_mov_b32 v174, v2
    v_mov_b32 v175, v3
    """)
    stamp(a, 4)
    spat_setup(a)
    srd(a, 40, 14, WS_Z2, Z_BYTES)
    a("s_mov_b32 s38, 0x40000")
    a.label(name + "_p")
    G = 120
    for n in range(6):
        a(f"s_add_u32 s36, s34, {n*4096}")
        a(f"buffer_load_dwordx4 {R(G+4*n,4)}, v175, s[44:47], s36 offen{SC}")
    a("s_mov_b64 s[36:37], 0")
    for n in range(6):
        a(f"v_cmp_ne_u64 vcc, s[76:77], {R(G+4*n+2,2)}")
        a("s_or_b64 s[36:37], s[36:37], vcc")
    a(f"""
    s_cmp_eq_u64 s[36:37], 0
    s_cbranch_scc1 {name}_p_ok
    s_sub_u32 s38, s38, 1
    s_cmp_eq_u32 s38, 0
    s_cbranch_scc1 {name}_p_ok
    s_sleep 2
    s_branch {name}_p
    """)
    a.label(name + "_p_ok")
    stamp(a, 5)
    for n in range(1, 6):
        for i in range(2): a(f"v_add_f32 v{G+i}, v{G+i}, v{G+4*n+i}")
    inv = f32h(1.0 / 2304.0)
    a(f"""
    v_mov_b32 v{G+2}, v{G}
    v_mov_b32 v{G+3}, v{G+1}
    v_permlane32_swap_b32 v{G}, v{G+2}
    v_permlane32_swap_b32 v{G+1}, v{G+3}
    v_add_f32 v{G}, v{G}, v{G+2}
    v_add_f32 v{G+1}, v{G+1}, v{G+3}
    v_mul_f32 v{G}, {inv}, v{G}
    v_mul_f32 v{G+1}, {inv}, v{G+1}
    v_fma_f32 v{G+1}, -v{G}, v{G}, v{G+1}
    v_max_f32 v{G+1}, 0, v{G+1}
    v_add_f32 v{G+1}, {f32h(1e-5)}, v{G+1}
    v_rsq_f32 v{G+1}, v{G+1}
    v_mul_f32_e64 v{G}, -v{G}, v{G+1}
    ds_write_b32 v174, v{G} offset:2048
    ds_write_b32 v174, v{G+1} offset:2560
    s_and_b32 s36, s6, 1
    s_lshl_b32 s36, s36, 8
    s_add_u32 s36, s36, {SCR + 2048}
    v_lshl_add_u32 v4, v15, 5, s36
    s_lshl_b32 s34, s33, 7
    s_lshl_b32 s35, s32, 1
    s_add_u32 s34, s34, s35
    s_lshl_b32 s34, s34, 10
    s_waitcnt lgkmcnt(0)
    s_barrier
    """)
    AB = [(S1, S2), (112, 128)]
    for rg in range(2):
        b_, a_ = AB[rg]
        for j in range(2):
            for h in range(2):
                a(f"ds_read_b128 {R(b_+8*j+4*h,4)}, v4 offset:{rg*128+j*64+h*16}")
                a(f"ds_read_b128 {R(a_+8*j+4*h,4)}, v4 offset:{512+rg*128+j*64+h*16}")
    k = 0
    for rg in range(2):
        b_, a_ = AB[rg]
        for ct in range(3):
            c = ACC + (rg * 3 + ct) * 16
            p = 144 + (k % 3) * 8; k += 1
            for i in range(16): a(f"v_fma_f32 v{c+i}, v{c+i}, v{a_+i}, v{b_+i}")
            for i in range(8): a(f"v_cvt_pk_bf16_f32 v{p+i}, v{c+2*i}, v{c+2*i+1}")
            a(f"s_add_u32 s35, s34, {ct*128*1024 + rg*2048}")
            for j in range(2): a(f"buffer_store_dwordx4 {R(p+4*j,4)}, v1, s[40:43], s35 offen offset:{1024*j}{SC}")
    a(f"s_lshl_b32 s36, s7, 4\ns_add_u32 s36, s36, s5\ns_add_u32 s36, s36, {FL_Z2}")
    if 'fine' in EXP: stamp(a, 11)
    publish(a, 36)

def w36_setup(a, vDW, isv):
    srd(a, 20, 10, 0, 576 * 3456)
    a(f"""
    s_mul_i32 s26, s7, 288
    s_add_u32 s26, s26, {2304 if isv else 0}
    s_movk_i32 s28, 3456
    s_mul_i32 s54, s6, 2304
    s_mov_b32 s57, 0
    s_mov_b32 s52, 0xffff
    s_mov_b32 s53, 0
    s_lshl_b32 s27, s6, {3 if isv else 2}
    """)
    for j in range(3):
        a(f"""
        v_add_u32 v6, {64*j}, v0
        v_mul_u32_u24 v7, 1821, v6
        v_lshrrev_b32 v7, 16, v7
        v_mul_u32_u24 v11, 36, v7
        v_sub_u32 v6, v6, v11
        v_cmp_lt_u32 vcc, 17, v6
        v_cndmask_b32_e64 v11, 0, 1, vcc
        v_mul_u32_u24 v12, 18, v11
        v_sub_u32 v6, v6, v12
        v_add_u32 v7, s27, v7
        """)
        if isv:
            a("""
            v_lshl_add_u32 v7, v11, 2, v7
            v_mul_lo_u32 v7, v7, s28
            """)
        else:
            a("""
            v_mul_lo_u32 v7, v7, s28
            v_mul_u32_u24 v12, 1152, v11
            v_add_u32 v7, v7, v12
            """)
        a(f"""
        v_lshl_add_u32 v7, v6, 4, v7
        v_add_u32 v7, s26, v7
        v_subrev_u32 v{vDW+j}, {1024*j}, v7
        """)
def w36_dma(vDW, lds, rows):
    return [f"s_add_u32 m0, s54, {lds}"] + \
           [f"buffer_load_dwordx4 v{vDW+j}, s[20:23], s57 offen offset:{1024*j} lds" for j in range(2)] + \
           ["s_mov_b64 exec, s[52:53]", f"buffer_load_dwordx4 v{vDW+2}, s[20:23], s57 offen offset:2048 lds", "s_mov_b64 exec, -1",
            f"s_add_u32 s57, s57, {rows*3456}"]

def gen_qk(a, name):
    ACC = 16; XF = 160; WF = 168
    vX, vW, vWb, vDX, vDW = 240, 1, 2, 244, 248
    WB = 32768; WS_ = 9216
    x_dma_setup(a, vDX)
    tx, tw = {}, {}
    tx[0] = emit_mix(a, x_dma(vDX, 0), [])
    w36_setup(a, vDW, False)
    for U in range(4): tw[U] = emit_mix(a, w36_dma(vDW, WB + U * WS_, 16), [])
    tx[1] = emit_mix(a, x_dma(vDX, 16384), [])
    if GO: nonce_sample(a, 4)
    bulk_prefetch(a)
    x_read_setup(a, vX, 55)
    a(f"""
    v_bfe_u32 v12, v0, 2, 2
    v_lshl_add_u32 v13, v10, 3, v12
    v_mul_u32_u24 v13, 576, v13
    v_bfe_u32 v14, v0, 4, 1
    v_mul_u32_u24 v14, 288, v14
    v_add_u32 v13, v13, v14
    v_add_u32 v13, {WB}, v13
    v_and_b32 v14, 3, v0
    v_mul_u32_u24 v14, 72, v14
    v_add_u32 v{vWb}, v13, v14
    v_add_u32 v{vWb}, 32, v{vWb}
    v_and_b32 v14, 1, v0
    v_lshl_add_u32 v13, v14, 4, v13
    v_and_b32 v14, 2, v0
    v_lshl_add_u32 v{vW}, v14, 2, v13
    """)
    def reads(U):
        S, u = U // 4, U % 4
        L = [f"ds_read_b128 {R(XF+(U%2)*4,4)}, v{vX+u} offset:{(S%2)*16384}"]
        base = (U % 4) * WS_
        for h in range(9):
            for t in range(2):
                if h < 8: L.append(f"ds_read_b64_tr_b16 {R(WF+(U%2)*36+4*h+2*t,2)}, v{vW} offset:{base+t*2304+36*h+(4 if h%2 else 0)}")
                else: L.append(f"ds_read_b64_tr_b16 {R(WF+(U%2)*36+4*h+2*t,2)}, v{vWb} offset:{base+t*2304}")
        return L
    def mfmas(U):
        return [f"{M32} {R(ACC+16*h,16)}, {R(WF+(U%2)*36+4*h,4)}, {R(XF+(U%2)*4,4)}, {R(ACC+16*h,16) if U else 0}" for h in range(9)]
    a.wait_vm(tw[0]); a("s_waitcnt lgkmcnt(0)"); a("s_barrier")
    stamp(a, 2)
    for x in reads(0): a(x)
    def step(U):
        S, u = U // 4, U % 4
        if U + 1 < 36:
            a.wait_vm(tw[U + 1])
            if u == 3: a.wait_vm(tx[S + 1])
            a.wait_lds_all(); a("s_barrier")
        fill = reads(U + 1) if U + 1 < 36 else []
        if GO and U == envi("GOQ", 16):
            nonce_get(a, name + "_n", 4)
            fill = fill + go_signal()
        mf = mfmas(U)
        ld = w36_dma(vDW, WB + (U % 4) * WS_, 16) if U + 4 < 36 else []
        xl = x_dma(vDX, (S % 2) * 16384) if (u == 3 and S + 2 < 9) else []
        groups = []
        cur = []
        for x in ld + xl:
            cur.append(x)
            if x.endswith(" lds"): groups.append(cur); cur = []
            elif x.startswith("s_mov_b64 exec, -1") or x.startswith("s_add_u32 s5"): groups[-1] += cur; cur = []
        t = None
        gi = [1, 4, 7] if not xl else [0, 1, 2, 4, 5, 6, 7]
        for i, m in enumerate(mf):
            a(m)
            for x in fill[3 * i:3 * i + 3]: a(x)
            if i in gi and groups:
                for x in groups.pop(0):
                    tk = a(x)
                    if x.endswith(" lds"):
                        if "s[20:23]" in x: tw[U + 4] = tk
                        else: t = tk
        assert not groups
        if t is not None: tx[S + 2] = t
    step(0)
    def body(it):
        for U in range(1 + 8 * it, 9 + 8 * it): step(U)
    a.roll(body, 4, "s65", name + "_l")
    for U in range(33, 36): step(U)
    stamp(a, 3)
    NON = 240
    if not GO: nonce_sample(a, NON)
    srd(a, 40, 14, WS_QA, WS_GATE - WS_QA)
    srd(a, 44, 14, WS_KV, KV_BYTES)
    a(f"""
    s_lshl_b32 s32, s5, 2
    s_add_u32 s32, s32, s6
    s_lshl_b32 s33, s7, 9
    s_add_u32 s33, s33, s32
    s_lshl_b32 s34, s33, 10
    s_mul_i32 s35, s33, {KV_TILE}
    s_lshl_b32 s36, s33, 7
    s_add_u32 s36, s36, {WS_QB - WS_QA}
    s_add_u32 s37, s35, {KV_KB}
    v_lshlrev_b32 v1, 9, v15
    v_lshl_add_u32 v1, v9, 4, v1
    v_lshlrev_b32 v2, 4, v0
    v_lshlrev_b32 v3, 14, v15
    v_lshl_add_u32 v3, v9, 2, v3
    s_mov_b32 s38, {2*64*KV_TILE}
    v_mul_lo_u32 v4, v15, s38
    v_lshl_add_u32 v4, v8, 2, v4
    v_mov_b32 v6, {f32h(CQ)}
    """)
    for h in range(9):
        c = ACC + 16 * h
        p = WF + (h % 4) * 8
        for i in range(8): a(f"v_mul_f32 v{c+i}, v6, v{c+i}")
        for i in range(8): a(f"v_cvt_pk_bf16_f32 v{p+i}, v{c+2*i}, v{c+2*i+1}")
        if h < 8:
            a(f"buffer_store_dwordx4 {R(p,4)}, v1, s[40:43], s34 offen{SC}")
            a(f"buffer_store_dwordx4 {R(p+4,4)}, v2, s[44:47], s35 offen{SC}")
            a(f"s_add_u32 s34, s34, {64*1024}\ns_add_u32 s35, s35, {64*KV_TILE}")
        else:
            for aa in range(2):
                for eo in range(2):
                    hh = 4 * aa + eo
                    a(f"s_add_u32 s38, s36, {hh*8192}\ns_add_u32 s39, s37, {hh*64*KV_TILE}")
                    a(f"buffer_store_dword v{p+2*aa+eo}, v3, s[40:43], s38 offen{SC}")
                    a(f"buffer_store_dword v{p+4+2*aa+eo}, v4, s[44:47], s39 offen{SC}")
    if not GO: nonce_get(a, name + "_n", NON)
    a(f"s_lshl_b32 s36, s7, 4\ns_add_u32 s36, s36, s5\ns_add_u32 s36, s36, {FL_QK}")
    publish(a, 36)
    spat_setup(a)

def gen_pf(a, name):
    if 'nopf4' in EXP: return
    srd(a, 40, 68, 0, 2304 * 1152)
    srd(a, 44, 66, 0, 576 * 1152)
    a(f"""
    s_lshr_b32 s30, s4, 2
    s_lshl_b32 s30, s30, 3
    s_add_u32 s30, s30, s3
    s_lshl_b32 s30, s30, 2
    s_add_u32 s30, s30, s6
    s_lshl_b32 s31, s30, 10
    s_lshl_b32 s30, s30, 15
    v_lshrrev_b32 v5, 3, v0
    v_and_b32 v6, 7, v0
    v_lshlrev_b32 v5, 12, v5
    v_lshl_add_u32 v5, v6, 4, v5
    """)
    L = [f"buffer_load_dwordx4 v[16:19], v5, s[20:23], s30 offen offset:{128*j} ;nowaw" for j in range(3, 16 if 'pf6' in EXP else 32)]
    if 'pf2' not in EXP:
        for j in range(11): L.append(f"s_add_u32 s32, s31, {j*256*1024}\nbuffer_load_dwordx4 v[16:19], v1, s[40:43], s32 offen ;nowaw")
        for j in range(3): L.append(f"s_add_u32 s32, s31, {j*256*1024}\nbuffer_load_dwordx4 v[16:19], v1, s[44:47], s32 offen ;nowaw")
    for x in L: a(x)
    a("s_waitcnt vmcnt(0)")

def gen_v(a, name):
    ACC = 16; WF = 104; XF = 160
    vX, vW, vG, vDX, vDW = 144, 148, 149, 150, 154
    WB = 32768; WS_ = 9216; GB = 79872; SL = 0
    a(f"s_setprio {envi('VPRIO', 1)}")
    x_dma_setup(a, vDX)
    tx, tw = {}, {}
    tx[0] = emit_mix(a, x_dma(vDX, 0), [])
    w36_setup(a, vDW, True)
    srd(a, 48, 66, 0, 1152)
    a(f"""
    v_lshlrev_b32 v2, 4, v0
    s_mov_b32 m0, {GB}
    buffer_load_dwordx4 v2, s[48:51], 0 offen lds
    buffer_load_dwordx4 v2, s[48:51], 0 offen offset:1024 lds
    """)
    for H in range(2): tw[H] = emit_mix(a, w36_dma(vDW, WB + H * WS_, 32), [])
    qk_prefetch(a, 244)
    tx[1] = emit_mix(a, x_dma(vDX, 16384), [])
    for H in range(2, 4): tw[H] = emit_mix(a, w36_dma(vDW, WB + H * WS_, 32), [])
    if not GO: bulk_prefetch(a)
    x_read_setup(a, vX, 55)
    a(f"""
    v_bfe_u32 v12, v0, 2, 2
    v_lshl_add_u32 v13, v10, 2, v12
    v_mul_u32_u24 v13, 576, v13
    v_and_b32 v14, 16, v0
    v_lshl_add_u32 v13, v14, 1, v13
    v_and_b32 v14, 3, v0
    v_lshl_add_u32 v13, v14, 3, v13
    v_add_u32 v{vW}, {WB}, v13
    v_lshlrev_b32 v{vG}, 4, v10
    v_add_u32 v{vG}, {GB}, v{vG}
    s_waitcnt lgkmcnt(0)
    s_mov_b32 s60, 0xffff0000
    s_mov_b32 s61, 0xffff0000
    """)
    def reads(U):
        S, u = U // 4, U % 4; H, up = U // 2, U % 2
        L = []
        if u == 0: L += [f"ds_read_b128 {R(XF+(S%2)*16+4*k,4)}, v{vX+k} offset:{(S%2)*16384}" for k in range(2)]
        if u == 1: L += [f"ds_read_b128 {R(XF+(S%2)*16+4*k,4)}, v{vX+k} offset:{(S%2)*16384}" for k in range(2, 4)]
        for T in range(5):
            for t in range(2):
                L.append(f"ds_read_b64_tr_b16 {R(WF+(U%2)*20+4*T+2*t,2)}, v{vW} offset:{(H%4)*WS_+up*4608+t*288+T*64}")
        L += ["s_mov_b64 exec, s[60:61]", f"ds_read_b128 {R(WF+(U%2)*20+16,4)}, v{vG} offset:{(U%8)*32} ;nowaw", "s_mov_b64 exec, -1"]
        if U % 8 == 7: L.append(f"v_add_u32 v{vG}, 256, v{vG}")
        return L
    def mfmas(U):
        S, u = U // 4, U % 4
        return [f"{M32} {R(ACC+16*T,16)}, {R(XF+(S%2)*16+4*u,4)}, {R(WF+(U%2)*20+4*T,4)}, {R(ACC+16*T,16) if U else 0}" for T in range(5)]
    a.wait_vm(tw[0]); a("s_waitcnt lgkmcnt(0)"); a("s_barrier")
    stamp(a, 2)
    for x in reads(0): a(x)
    def step(U):
        S, u = U // 4, U % 4; H, up = U // 2, U % 2
        ld = []; key = None
        if up == 1 and H + 1 < 18:
            a.wait_vm(tw[H + 1])
            if u == 3: a.wait_vm(tx[S + 1])
            a.wait_lds_all(); a("s_barrier")
            if H + 4 < 18: ld = w36_dma(vDW, WB + (H % 4) * WS_, 32); key = (tw, H + 4)
        if u == 2 and S + 2 < 9:
            ld = x_dma(vDX, (S % 2) * 16384); key = (tx, S + 2)
        fill = reads(U + 1) if U + 1 < 36 else []
        t = emit_mix(a, mfmas(U), fill[:4] + ld + fill[4:])
        if key: key[0][key[1]] = t
    step(0)
    def body(it):
        for U in range(1 + 8 * it, 9 + 8 * it): step(U)
    a.roll(body, 4, "s65", name + "_l")
    for U in range(33, 36): step(U)
    stamp(a, 3)
    a(f"""
    v_mov_b32 v252, 0
    s_mov_b32 s70, 0x7ff00000
    s_lshl_b32 s71, s5, 4
    s_add_u32 s71, s71, s7
    s_add_u32 s71, s71, {FL_Z1 + 12}
    """)
    NON = 240
    nonce_sample(a, NON)
    srd(a, 44, 14, WS_KV, KV_BYTES)
    srd(a, 40, 14, WS_GATE, 32768)
    a(f"""
    s_lshl_b32 s32, s5, 2
    s_add_u32 s32, s32, s6
    s_lshl_b32 s33, s7, 9
    s_add_u32 s33, s33, s32
    s_mul_i32 s35, s33, {KV_TILE}
    s_add_u32 s35, s35, {KV_V}
    s_mul_i32 s36, s6, 10368
    s_add_u32 s36, s36, {SL}
    v_mul_u32_u24 v5, {KV_VR}, v15
    v_add_u32 v5, s36, v5
    """)
    for T in range(5):
        c = ACC + 16 * T
        p = WF + (T % 4) * 8
        a(f"""
        v_add_u32 v1, {32*T}, v8
        v_mul_u32_u24 v2, 3641, v1
        v_lshrrev_b32 v2, 16, v2
        v_mul_u32_u24 v3, 18, v2
        v_sub_u32 v3, v1, v3
        """)
        if T == 4:
            a("""
            v_cmp_lt_u32 vcc, 15, v8
            v_and_b32 v4, 7, v8
            v_cndmask_b32 v2, v2, v4, vcc
            v_lshrrev_b32 v4, 3, v8
            v_add_u32 v4, 16, v4
            v_cndmask_b32 v3, v3, v4, vcc
            """)
        a(f"""
        v_mul_u32_u24 v2, 1280, v2
        v_lshl_add_u32 v2, v3, 4, v2
        v_add_u32 v{150+T}, v2, v5
        """)
        for i in range(8): a(f"v_cvt_pk_bf16_f32 v{p+i}, v{c+2*i}, v{c+2*i+1}")
        if T == 4:
            a("""
            v_cmp_lt_u32 s[62:63], 23, v8
            v_mov_b32 v4, 0x3f803f80
            v_cndmask_b32 v4, v4, 0, s[62:63]
            """)
            for i in range(8): a(f"v_cndmask_b32 v{p+i}, v{p+i}, v4, vcc")
        for j in range(2): a(f"ds_write_b128 v{150+T}, {R(p+4*j,4)} offset:{2*KV_VR*j}")
    c = ACC + 64
    for r in range(16): a(f"v_mul_f32 v{c+r}, {f32h(-LOG2E)}, v{c+r}")
    for r in range(16): a(f"v_exp_f32 v{c+r}, v{c+r}")
    for r in range(16): a(f"v_add_f32 v{c+r}, 1.0, v{c+r}")
    for r in range(16): a(f"v_rcp_f32 v{c+r}, v{c+r}")
    a(f"""
    v_lshlrev_b32 v1, 5, v15
    v_add_u32 v1, s36, v1
    s_mov_b32 s60, 0x10000
    s_mov_b32 s61, 0x10000
    s_mov_b64 exec, s[60:61]
    """)
    for j in range(2):
        for h in range(2):
            a(f"ds_write_b128 v1, {R(c+8*j+4*h,4)} offset:{10240+64*j+16*h}")
    a(f"""
    s_mov_b64 exec, -1
    v_lshlrev_b32 v1, 4, v0
    v_add_u32 v1, s36, v1
    v_lshlrev_b32 v2, 2, v8
    v_add_u32 v3, s36, v2
    v_lshl_add_u32 v2, v15, 30, v2
    s_mov_b32 s38, {64*KV_TILE - 1280}
    s_lshl_b32 s37, s7, 13
    s_lshl_b32 s39, s32, 7
    s_add_u32 s37, s37, s39
    s_waitcnt lgkmcnt(0)
    ds_read_b32 v160, v3 offset:10240
    """)
    for i in range(10): a(f"ds_read_b128 {R(164+4*i,4)}, v1 offset:{1024*i}")
    a(f"buffer_store_dword v160, v2, s[40:43], s37 offen{SC}")
    for i in range(10):
        a(f"""
        v_add_u32 v4, {64*i}, v0
        v_mul_u32_u24 v5, 820, v4
        v_lshrrev_b32 v5, 16, v5
        v_mul_lo_u32 v5, v5, s38
        v_lshl_add_u32 v{204+i}, v4, 4, v5
        """)
        a(f"buffer_store_dwordx4 {R(164+4*i,4)}, v{204+i}, s[44:47], s35 offen{SC}")
    if not GO: nonce_get(a, name + "_n", NON)
    a(f"s_lshl_b32 s36, s7, 4\ns_add_u32 s36, s36, s5\ns_add_u32 s36, s36, {FL_V}")
    publish(a, 36)

exec(open(os.path.join(os.path.dirname(os.path.abspath(__file__)), "kf2.py")).read())
```
